```python
import torch

def _softmax(x, axis=-1):
    return torch.softmax(x, dim=axis)
def _gelu(x):
    return torch.nn.functional.gelu(x, approximate="tanh")
def _silu(x):
    return torch.nn.functional.silu(x)
def _sigmoid(x):
    return torch.sigmoid(x)
def _layernorm(x, axis=-1, eps=1e-5):
    m = x.mean(dim=axis, keepdim=True)
    v = x.var(dim=axis, keepdim=True, unbiased=False)
    return (x - m) / torch.sqrt(v + eps)
def _scatter_add(tgt, idx, src, axis=0):
    return tgt.clone().index_add_(axis, idx, src)
def _segment_sum(src, seg, n):
    out = torch.zeros((n,) + src.shape[1:], dtype=src.dtype)
    return out.index_add_(0, seg, src)
def _pad(x, pw):
    flat = tuple(v for pair in reversed(pw) for v in pair)
    return torch.nn.functional.pad(x, flat)

kernel_name = 'parallel_sum__linear_kernel_hedgehog__mixer_channel_mlp__prompt'

def setup_inputs():

    _w = (lambda a: (lambda t: t.to(torch.bfloat16) if t.is_floating_point() else t)(torch.as_tensor(a)))
    def _A_setup():
        B, S, D, H = 1, 2048, 512, 32
        Dh = D // H
        return {
            "x": _w((lambda *s: torch.randn(*s, dtype=torch.bfloat16) * 0.05)(B, S, D)),
            "wqkv": _w((lambda *s: torch.randn(*s, dtype=torch.bfloat16) * 0.2)(D, 3 * D)),
            "w_phi": _w((lambda *s: torch.randn(*s, dtype=torch.bfloat16) * 0.2)(H, Dh, Dh) * (Dh ** -0.5)),
            "wo": _w((lambda *s: torch.randn(*s, dtype=torch.bfloat16) * 0.05)(D, D)),
        }
    _A_in = _A_setup()

    def _B_setup():
        B, S, D, F = 1, 2048, 512, 1376
        return {
            "x": _w((lambda *s: torch.randn(*s, dtype=torch.bfloat16) * 0.05)(B, S, D)),
            "w1": _w((lambda *s: torch.randn(*s, dtype=torch.bfloat16) * 1.6)(D, F) * (D ** -0.5)),
            "b1": _w((lambda *s: torch.randn(*s, dtype=torch.bfloat16) * 1.6)(F)),
            "w2": _w((lambda *s: torch.randn(*s, dtype=torch.bfloat16) * 0.05)(F, D) * (F ** -0.5)),
            "b2": _w((lambda *s: torch.randn(*s, dtype=torch.bfloat16) * 0.05)(D)),
        }
    _B_in = _B_setup()

    return {
        "A_x": _A_in["x"],
        "A_wqkv": _A_in["wqkv"],
        "A_w_phi": _A_in["w_phi"],
        "A_wo": _A_in["wo"],
        "B_x": _B_in["x"],
        "B_w1": _B_in["w1"],
        "B_b1": _B_in["b1"],
        "B_w2": _B_in["w2"],
        "B_b2": _B_in["b2"],
    }

def reference(A_x, A_wqkv, A_w_phi, A_wo, B_x, B_w1, B_b1, B_w2, B_b2):
    def _A_ref(x, wqkv, w_phi, wo):
        B, S, D = x.shape
        H = 32; Dh = D // H
        qkv = (lambda x, *d: x.permute(*d))((x @ wqkv).reshape(B, S, 3, H, Dh), 2, 0, 3, 1, 4)
        q, k, v = qkv[0], qkv[1], qkv[2]
        pq = torch.einsum("bhsd,hdf->bhsf", q, w_phi)
        pk = torch.einsum("bhsd,hdf->bhsf", k, w_phi)
        phi_q = torch.concatenate([_softmax(pq, axis=-1), _softmax(-pq, axis=-1)], axis=-1)
        phi_k = torch.concatenate([_softmax(pk, axis=-1), _softmax(-pk, axis=-1)], axis=-1)
        kv = torch.einsum("bhsf,bhsd->bhfd", phi_k, v)
        z  = torch.einsum("bhsf->bhf", phi_k)
        num = torch.einsum("bhqf,bhfd->bhqd", phi_q, kv)
        den = torch.einsum("bhqf,bhf->bhq", phi_q, z)[..., None] + 1e-6
        o = num / den
        return (lambda x, *d: x.permute(*d))(o, 0, 2, 1, 3).reshape(B, S, D) @ wo

    def _B_ref(x, w1, b1, w2, b2):
        y = _layernorm(x, axis=-1)
        h = _gelu(torch.einsum("bsd,df->bsf", y, w1) + b1)
        return torch.einsum("bsf,fd->bsd", h, w2) + b2

    x = A_x
    xn = _layernorm(x, axis=-1)
    return x + _A_ref(xn, A_wqkv, A_w_phi, A_wo) + _B_ref(xn, B_w1, B_b1, B_w2, B_b2)
```

```python
import re
REG=re.compile(r'\b([vas])\[(\d+):(\d+)\]|\b([vas])(\d+)\b|\b(vcc|m0|exec)\b')
TRANS=('v_exp_f32','v_log_f32','v_rcp_f32','v_rsq_f32','v_sqrt_f32')
def regs(tok):
    out=[]
    for m in REG.finditer(tok):
        if m.group(1): out+= [m.group(1)+str(i) for i in range(int(m.group(2)),int(m.group(3))+1)]
        elif m.group(4): out.append(m.group(4)+m.group(5))
        else: out.append(m.group(6))
    return out
def parse(line):
    s=line.split(';')[0].strip()
    if not s or s.endswith(':') or s.startswith('.'): return None
    p=s.split(None,1); op=p[0]; ops=[o.strip() for o in p[1].split(',')] if len(p)>1 else []
    k='salu'; d=[]; r=[]
    if op.startswith('v_mfma'): k='mfma'; d=regs(ops[0]); r=[regs(o) for o in ops[1:4]]; return dict(op=op,k=k,d=d,ab=r[0]+r[1],c=r[2],r=r[0]+r[1]+r[2])
    if op.startswith('v_'):
        k='valu'; d=regs(ops[0]); r=[x for o in ops[1:] for x in regs(o)]
        if 'swap' in op: d=regs(ops[0])+regs(ops[1]); r=list(d)
        if op.startswith(('v_fmac','v_dot2c')) : r+=d
    elif op.startswith(('buffer_','global_')):
        k='vmem'
        if ' lds' in s: r=[x for o in ops for x in regs(o)]+['m0']; k='dma'
        elif 'store' in op or ('atomic' in op): r=[x for o in ops for x in regs(o)]
        else:
            d=regs(ops[0]); r=[x for o in ops[1:] for x in regs(o)]
    elif op.startswith('ds_'):
        k='ds'
        if 'write' in op or 'add' in op: r=[x for o in ops for x in regs(o)]
        else: d=regs(ops[0]); r=[x for o in ops[1:] for x in regs(o)]
    elif op.startswith('s_'):
        if op.startswith(('s_cmp','s_cbranch','s_branch','s_waitcnt','s_barrier','s_nop','s_endpgm','s_setprio','s_sleep')): pass
        else: d=regs(ops[0]); r=[x for o in ops[1:] for x in regs(o)]
    return dict(op=op,k=k,d=d,r=r,line=s)
def need(p,c):
    n=0; pd=set(p['d']); cr=set(c['r']); cd=set(c['d'])
    if p['k']=='valu':
        vg={x for x in pd if x[0] in 'va' and x!='vcc'}; sg=pd-vg
        if vg&cr:
            if c['k']=='mfma': n=max(n,2)
            if 'permlane' in c['op'] or 'dpp' in c.get('line',''): n=max(n,2)
            if 'readlane' in c['op'] or 'readfirstlane' in c['op']: n=max(n,1)
            if p['op'].startswith(TRANS) and c['k'] in('valu',): n=max(n,1)
        if sg&cr:
            if c['k']=='valu': n=max(n,2)
            if c['k'] in('vmem','dma'): n=max(n,5)
        if 'exec' in pd and c['k'] in ('mfma','valu'): n=max(n,4)
    if p['k']=='mfma':
        big=12 if '32x32' in p['op'] else 8
        if c['k']=='mfma':
            if pd&set(c['ab']): n=max(n,big)
            elif pd&set(c['c']) and not (p['d']==c['c'] and p['op']==c['op']): n=max(n,big-2)
            elif pd&cd and not (p['d']==c['c']): n=max(n,big)
        elif pd&(cr|cd): n=max(n,big)
        if c['k']=='valu' and set(p['c'])&cd: n=max(n,big-5)
    if p['k']=='vmem' and ('x4' in p['op'] or 'x3' in p['op']) and 'store' in p['op'] and set(p['r'])&cd: n=max(n,2)
    if p['k']=='salu' and 'm0' in pd and c['k']=='dma': n=max(n,1)
    return n
def ws_of(i):
    if i['op']=='s_nop': return int(i['line'].split()[1])+1
    return 1
def pad(lines):
    out=[]; hist=[]; labels={}
    def gap(hist,c):
        dist=0; worst=0
        for p in reversed(hist[-24:]):
            worst=max(worst, need(p,c)-dist); dist+=ws_of(p)
            if dist>=13: break
        return worst
    flat=[l for x in lines for l in x.split('\n')]
    for idx,l in enumerate(flat):
        s=l.split(';')[0].strip()
        if s.endswith(':'): labels[s[:-1]]=idx
    for idx,l in enumerate(flat):
        c=parse(l)
        if c is None: out.append(l); continue
        g=gap(hist,c)
        if c['op'].startswith(('s_cbranch','s_branch')):
            tgt=c['line'].split()[1]; h=list(hist)+[c]; j=labels[tgt]; n=0; extra=0
            while n<14 and j<len(flat):
                t=parse(flat[j]); j+=1
                if t is None: continue
                extra=max(extra,gap(h,t)); h.append(t); n+=1
                if t['op'].startswith(('s_branch','s_endpgm')): break
            g=max(g,extra)
        if g>0:
            nl=f"s_nop {g-1}"; out.append("    "+nl); hist.append(parse(nl))
        out.append("    "+l.strip()); hist.append(c)
        if c['op'] in ('s_branch','s_endpgm'): hist=[]
    return out
class VM:
    def __init__(s,emit): s.q=[]; s.emit=emit
    def issue(s,line,tag,opt=False): s.emit(line); s.q.append((tag,opt)); assert len(s.q)<=63+0 or True
    def wait(s,tag):
        idx=[i for i,(t,o) in enumerate(s.q) if t==tag]
        if not idx: return
        last=idx[-1]; n=sum(1 for t,o in s.q[last+1:] if not o)
        assert n<=63
        s.emit(f"s_waitcnt vmcnt({n})"); s.q=s.q[last+1:]
def kdesc(name,vg,acc,sg=96):
    return f'''.amdhsa_kernel {name}
  .amdhsa_next_free_vgpr {vg}
  .amdhsa_next_free_sgpr {sg}
  .amdhsa_accum_offset {acc}
  .amdhsa_group_segment_fixed_size 0
  .amdhsa_kernarg_size 96
  .amdhsa_user_sgpr_count 2
  .amdhsa_user_sgpr_kernarg_segment_ptr 1
  .amdhsa_system_sgpr_workgroup_id_x 1
.end_amdhsa_kernel'''
```

```python
from asmlib import *
H_OFF=0; PQ_OFF=0x600000; KVP_OFF=0xA00000; KVF_OFF=0xC00000; ST_OFF=0x2000000
WS_SIZE=0x3000000
LOG2E=1.4426950408889634
import struct
def f32(x): return "0x%08x"%struct.unpack("<I",struct.pack("<f",x))[0]
def stamp_fns(A,on,kidx,nw):
    def st(i):
        if on: A(f"s_memrealtime s[{64+2*i}:{65+2*i}]")
    def flush(n,tmp,wreg):
        if not on: return
        A("s_waitcnt lgkmcnt(0)")
        A(f"s_lshl_b32 s60, s2, 3\ns_add_u32 s60, s60, {wreg}\ns_lshl_b32 s60, s60, 6\ns_add_u32 s60, s60, {ST_OFF+kidx*0x40000}")
        A(f"v_mov_b32 v{tmp+1}, 0")
        for i in range(n): A(f"v_mov_b32 v{tmp}, s{64+2*i}\nbuffer_store_dword v{tmp}, v{tmp+1}, s[12:15], s60 offen offset:{4*i}")
    return st,flush
def srd(A,r,ptr,size): A(f"s_mov_b32 s{r}, s{ptr}\ns_mov_b32 s{r+1}, s{ptr+1}\ns_mov_b32 s{r+2}, {size}\ns_mov_b32 s{r+3}, 0x20000")
def k1(STAMP=False):
    L=[]; A=L.append
    st,flush=stamp_fns(A,STAMP,0,8)
    A("k1_kernel:")
    A("s_cmp_ge_u32 s2, 256\ns_cbranch_scc1 K1_END")
    st(0)
    A("s_load_dwordx4 s[32:35], s[0:1], 0\ns_load_dwordx2 s[36:37], s[0:1], 16\ns_load_dwordx4 s[40:43], s[0:1], 40\ns_load_dwordx2 s[44:45], s[0:1], 88")
    A("v_lshrrev_b32 v20, 6, v0\nv_and_b32 v1, 63, v0\nv_readfirstlane_b32 s22, v20")
    A("s_and_b32 s31, s2, 7\ns_lshr_b32 s38, s2, 3\ns_and_b32 s20, s31, 1\ns_lshl_b32 s20, s20, 3\ns_lshr_b32 s39, s38, 2\ns_add_u32 s20, s20, s39")
    A("s_lshr_b32 s21, s31, 1\ns_and_b32 s39, s38, 3\ns_lshl_b32 s39, s39, 2\ns_add_u32 s21, s21, s39")
    A("s_and_b32 s23, s22, 3\ns_lshr_b32 s24, s22, 2\ns_xor_b32 s46, s23, s24")
    A("v_lshrrev_b32 v20, 3, v1\nv_lshrrev_b32 v21, 4, v1\nv_and_b32 v22, 7, v1")
    A("s_lshl_b32 s39, s20, 7\ns_lshl_b32 s47, s22, 4\ns_add_u32 s39, s39, s47\nv_add_u32 v23, s39, v20\nv_lshlrev_b32 v23, 10, v23")
    A("v_xor_b32 v24, v22, v21\nv_lshl_add_u32 v2, v24, 4, v23\nv_xor_b32 v24, 4, v24\nv_lshl_add_u32 v3, v24, 4, v23\nv_add_u32 v3, 0x2000, v3")
    A("v_and_b32 v24, 1, v21\nv_lshlrev_b32 v24, 2, v24\nv_xor_b32 v24, v22, v24\nv_lshlrev_b32 v24, 4, v24\ns_lshl_b32 s47, s22, 3\nv_add_u32 v25, s47, v20")
    A("v_lshrrev_b32 v26, 5, v1\nv_and_b32 v27, 31, v1\ns_waitcnt lgkmcnt(0)")
    srd(A,4,32,2048*1024); srd(A,12,44,WS_SIZE)
    A(f"s_cmp_ge_u32 s2, 8\ns_cbranch_scc1 K1_NOS\ns_lshl_b32 s47, s2, 13\ns_add_u32 s47, s47, {KVF_OFF}\nv_lshlrev_b32 v28, 4, v0\nv_mov_b32 v64, -1\nv_mov_b32 v65, -1\nv_mov_b32 v66, -1\nv_mov_b32 v67, -1\nbuffer_store_dwordx4 v[64:67], v28, s[12:15], s47 offen\nK1_NOS:")
    A("s_cmp_ge_u32 s21, 8\ns_cbranch_scc1 K1_HSET")
    srd(A,8,34,512*3072); srd(A,16,36,32*512)
    A("s_lshl_b32 s47, s21, 2\ns_lshl_b32 s53, s24, 1\ns_add_u32 s56, s47, s53\ns_lshl_b32 s47, s56, 9\nv_and_b32 v20, 15, v1\nv_lshlrev_b32 v20, 1, v20\nv_lshl_add_u32 v20, v26, 7, v20")
    for e in range(2):
        for i in range(8):
            d=(i&3)+8*(i>>2)
            A(f"buffer_load_ushort v{176+8*e+i}, v20, s[16:19], s47 offen offset:{e*512+d*32}")
    A("s_movk_i32 s48, 3072\ns_movk_i32 s29, 1024\ns_lshl_b32 s28, s21, 7\ns_branch K1_SET")
    A("K1_HSET:")
    srd(A,8,40,512*2752); srd(A,16,42,2752)
    A("s_movk_i32 s48, 2752\ns_movk_i32 s29, 128\ns_sub_u32 s49, s21, 8\ns_mul_i32 s28, s49, 384")
    A("v_subrev_u32 v20, 128, v0\nv_lshlrev_b32 v20, 1, v20\ns_mul_i32 s47, s49, 384\nv_add_u32 v20, s47, v20\nbuffer_load_ushort v28, v20, s[16:19], 0 offen")
    A("K1_SET:")
    A("v_mul_lo_u32 v4, s48, v25\nv_add_u32 v4, v4, v24\ns_lshl_b32 s30, s48, 6\ns_mov_b32 s27, 0")
    A("s_lshl_b32 s50, s22, 11\ns_lshl_b32 s51, s22, 10\ns_add_u32 s51, s51, 16384\ns_mov_b32 s26, 0")
    def dma_list():
        r=[]
        r.append("s_add_u32 m0, s26, s50\ns_add_u32 s53, s28, s29\nbuffer_load_dwordx4 v2, s[4:7], s27 offen lds")
        r.append("s_add_u32 m0, m0, 1024\ns_add_u32 s54, s53, s29\nbuffer_load_dwordx4 v3, s[4:7], s27 offen lds")
        r.append("s_add_u32 m0, s26, s51\ns_add_u32 s27, s27, 128\nbuffer_load_dwordx4 v4, s[8:11], s28 offen lds")
        r.append("s_add_u32 m0, m0, 8192\ns_add_u32 s28, s28, s30\nbuffer_load_dwordx4 v4, s[8:11], s53 offen lds")
        r.append("s_add_u32 m0, m0, 8192\ns_add_u32 s26, s26, 40960\nbuffer_load_dwordx4 v4, s[8:11], s54 offen lds")
        return r
    for s in range(3):
        for d in dma_list(): A(d)
    A("s_lshl_b32 s47, s23, 5\nv_add_u32 v20, s47, v27")
    A("v_bfe_u32 v21, v20, 1, 3\nv_xor_b32 v21, v21, v26\nv_lshlrev_b32 v20, 7, v20")
    for j in range(4):
        A(f"s_xor_b32 s47, s46, {j}\ns_lshl_b32 s47, s47, 1\nv_xor_b32 v22, s47, v21\nv_lshl_add_u32 v{5+j}, v22, 4, v20")
    A("v_bfe_u32 v20, v1, 2, 2\nv_lshl_add_u32 v20, v26, 3, v20\nv_lshlrev_b32 v20, 7, v20")
    A("v_bfe_u32 v21, v1, 4, 1\nv_bfe_u32 v22, v1, 1, 1\nv_lshl_add_u32 v21, v21, 1, v22\nv_bfe_u32 v22, v1, 3, 1\nv_xor_b32 v22, s24, v22\nv_lshl_add_u32 v21, v22, 2, v21")
    A("v_lshl_add_u32 v20, v21, 4, v20\nv_and_b32 v22, 1, v1\nv_lshl_add_u32 v20, v22, 3, v20")
    for j in range(4):
        A(f"s_xor_b32 s47, s46, {j}\ns_lshl_b32 s47, s47, 11\ns_add_u32 s47, s47, 16384\nv_add_u32 v{36+j}, s47, v20")
    for r in list(range(10,20))+list(range(64,112))+list(range(128,144)): A(f"v_mov_b32 v{r}, 0")
    A("s_mov_b32 s25, 0\ns_mov_b32 s55, 0xffff0000\ns_mov_b32 s59, 0xfffe2000")
    XB=[112,128]; WB=[116,132]
    def reads(j,b):
        r=[f"ds_read_b128 v[{XB[b]}:{XB[b]+3}], v{5+j}"]
        for t in range(3):
            for rd in range(2): r.append(f"ds_read_b64_tr_b16 v[{WB[b]+4*t+2*rd}:{WB[b]+4*t+2*rd+1}], v{36+j} offset:{t*8192+rd*512}")
        return r
    def stats(j,b):
        r=[]
        if j in (0,2):
            for i in range(4):
                x=XB[b]+i; a,c=20+2*(i&1),21+2*(i&1)
                r+= [f"v_lshlrev_b32 v{a}, 16, v{x}",f"v_and_b32 v{c}, s55, v{x}",f"v_add_f32 v10, v10, v{a}",f"v_add_f32 v11, v11, v{c}",f"v_fmac_f32 v12, v{a}, v{a}",f"v_fmac_f32 v13, v{c}, v{c}"]
        else:
            lst=[(0,i) for i in range(4)]+[(2,0),(2,1)] if j==1 else [(1,i) for i in range(4)]+[(2,2),(2,3)]
            for n,(t,i) in enumerate(lst):
                x=WB[b]+4*t+i; a,c=20+2*(n&1),21+2*(n&1)
                r+= [f"v_lshlrev_b32 v{a}, 16, v{x}",f"v_and_b32 v{c}, s55, v{x}",f"v_add_f32 v{14+2*t}, v{14+2*t}, v{a}",f"v_add_f32 v{15+2*t}, v{15+2*t}, v{c}"]
        return r
    def mfmas(b,qkv):
        r=[]
        for t in range(3):
            x=f"v[{XB[b]}:{XB[b]+3}]"; w=f"v[{WB[b]+4*t}:{WB[b]+4*t+3}]"; c=f"v[{64+16*t}:{79+16*t}]"
            r.append(f"v_mfma_f32_32x32x16_bf16 {c}, {x}, {w}, {c}" if (qkv and t==2) else f"v_mfma_f32_32x32x16_bf16 {c}, {w}, {x}, {c}")
        return r
    def step(jc,b,qkv,rds):
        m=mfmas(b,qkv); s=stats(jc,b)
        for i in range(3):
            A(m[i])
            for x in rds[i*3:(i+1)*3 if i<2 else 99]: A(x)
            for x in s[i*8:(i+1)*8]: A(x)
    def mainloop(P,qkv):
        A(f"{P}_LOOP:")
        A(f"s_cmp_lt_u32 s25, 6\ns_cbranch_scc1 {P}_W10\ns_cmp_eq_u32 s25, 6\ns_cbranch_scc1 {P}_W5\ns_waitcnt vmcnt(0)\n{P}_W5:\ns_waitcnt vmcnt(5)\n{P}_W10:\ns_waitcnt vmcnt(10)")
        A("s_barrier")
        for x in reads(0,0): A(x)
        A(f"s_cmp_ge_u32 s25, 5\ns_cbranch_scc1 {P}_NODMA")
        for d in dma_list(): A(d)
        A(f"s_cmp_eq_u32 s26, 163840\ns_cselect_b32 s26, 0, s26\n{P}_NODMA:")
        step(3,1,qkv,[])
        A("s_waitcnt lgkmcnt(0)"); step(0,0,qkv,reads(1,1))
        A("s_waitcnt lgkmcnt(0)"); step(1,1,qkv,reads(2,0))
        A("s_waitcnt lgkmcnt(0)"); step(2,0,qkv,reads(3,1))
        A("s_add_u32 s25, s25, 1\ns_and_b32 s47, s25, 3\ns_cmp_eq_u32 s47, 0\ns_cselect_b32 s47, s59, 40960")
        for r in (5,6,7,8,36,37,38,39): A(f"v_add_u32 v{r}, s47, v{r}")
        A(f"s_cmp_lt_u32 s25, 8\ns_waitcnt lgkmcnt(0)\ns_cbranch_scc1 {P}_LOOP")
        step(3,1,qkv,[])
        st(2)
        A("v_add_f32 v10, v10, v11\nv_add_f32 v12, v12, v13\nv_add_f32 v14, v14, v15\nv_add_f32 v16, v16, v17\nv_add_f32 v18, v18, v19\nv_mov_b32 v19, v18")
        A("v_permlane32_swap_b32 v10, v12\nv_permlane32_swap_b32 v14, v16\nv_permlane32_swap_b32 v18, v19")
        A("s_lshl_b32 s47, s24, 9\ns_lshl_b32 s53, s23, 7\ns_add_u32 s47, s47, s53\nv_lshlrev_b32 v20, 2, v27\nv_lshl_add_u32 v21, v26, 10, v20\nv_add_u32 v21, s47, v21")
        A("s_mul_i32 s47, s23, 768\ns_lshl_b32 s53, s24, 7\ns_add_u32 s47, s47, s53\nv_add_u32 v20, s47, v20\nv_lshl_add_u32 v22, v26, 8, v20")
        A("v_add_f32 v10, v10, v12\nv_add_f32 v14, v14, v16\nv_add_f32 v18, v18, v19")
        A("ds_write_b32 v21, v10\nds_write_b32 v22, v14 offset:2048\nds_write_b32 v20, v18 offset:2560")
        A(f"v_lshlrev_b32 v20, 2, v0\ns_waitcnt lgkmcnt(0)\ns_barrier\ns_cmp_ge_u32 s22, 2\ns_cbranch_scc1 {P}_F2")
        A("ds_read_b32 v10, v20\nds_read_b32 v11, v20 offset:512\nds_read_b32 v12, v20 offset:1024\nds_read_b32 v13, v20 offset:1536\ns_waitcnt lgkmcnt(0)")
        A(f"v_add_f32 v10, v10, v11\nv_add_f32 v12, v12, v13\nv_mul_f32 v10, {f32(1/512)}, v10\nv_mul_f32 v11, v10, v10\nv_mov_b32 v13, {f32(1/512)}\nv_fma_f32 v12, v12, v13, -v11\nv_max_f32 v12, 0, v12")
        A(f"v_add_f32 v11, {f32(1e-5)}, v12\nv_rsq_f32 v11, v11")
        if not qkv: A(f"v_mul_f32 v13, v11, v11\nv_fmaak_f32 v13, v13, v12, {f32(1e-5)}\nv_rsq_f32 v13, v13\nv_mul_f32 v11, v11, v13")
        A(f"v_mul_f32 v10, v10, v11\nds_write_b32 v20, v10 offset:8192\nds_write_b32 v20, v11 offset:8704\ns_branch {P}_F3")
        A(f"{P}_F2:\ns_cmp_ge_u32 s22, 5\ns_cbranch_scc1 {P}_F3")
        A("ds_read_b32 v10, v20 offset:1536\nds_read_b32 v11, v20 offset:2304\nds_read_b32 v12, v20 offset:3072\nds_read_b32 v13, v20 offset:3840\ns_waitcnt lgkmcnt(0)")
        A("v_add_f32 v10, v10, v11\nv_add_f32 v12, v12, v13\nv_add_f32 v10, v10, v12\nds_write_b32 v20, v10 offset:8704")
        if not qkv: A("v_lshlrev_b32 v28, 16, v28\nds_write_b32 v20, v28 offset:9728")
        A(f"{P}_F3:")
        A("s_lshl_b32 s47, s23, 7\nv_lshlrev_b32 v20, 2, v27\nv_add_u32 v22, s47, v20\ns_lshl_b32 s53, s24, 7\nv_lshlrev_b32 v21, 4, v26\nv_add_u32 v21, s53, v21")
        A("s_waitcnt lgkmcnt(0)\ns_barrier")
        A("ds_read_b32 v10, v22 offset:8192\nds_read_b32 v11, v22 offset:8704")
    A("s_cmp_ge_u32 s21, 8\ns_cbranch_scc1 K1_H")
    st(1)
    mainloop("Q",True)
    A("v_and_b32 v23, 16, v1\nv_mul_u32_u24 v23, 0x800, v23\nv_lshl_or_b32 v23, v23, 16, v23")
    for r in range(8): A(f"v_lshl_or_b32 v{28+r}, v{177+2*r}, 16, v{176+2*r}\nv_xor_b32 v{28+r}, v23, v{28+r}")
    def rdq(base,addr,off):
        for q in range(4): A(f"ds_read_b128 v[{base+4*q}:{base+4*q+3}], v{addr} offset:{off+32*q}")
    rdq(112,21,9216); rdq(128,21,9216+256)
    A("s_lshl_b32 s47, s23, 7\nv_lshlrev_b32 v23, 4, v26\nv_add_u32 v23, s47, v23\nv_add_u32 v24, s53, v20")
    rdq(144,23,8192); rdq(160,23,8704); A("ds_read_b32 v12, v24 offset:9728")
    A(f"s_lshl_b32 s47, s20, 2\ns_add_u32 s47, s47, s23\ns_lshl_b32 s47, s47, 5\ns_add_u32 s47, s47, s56\ns_lshl_b32 s47, s47, 11\ns_add_u32 s57, s47, {PQ_OFF}\nv_lshlrev_b32 v25, 4, v1")
    A("s_mul_i32 s47, s24, 18432\ns_mul_i32 s53, s23, 2304\ns_add_u32 s47, s47, s53\nv_mul_u32_u24 v24, 72, v27\nv_lshl_add_u32 v24, v26, 3, v24\nv_add_u32 v24, s47, v24")
    A(f"s_mov_b32 s58, {f32(LOG2E)}")
    for t in range(2):
        A(f"s_waitcnt lgkmcnt({13-4*t})")
        for r in range(16):
            c=112+16*t+r; a=64+16*t+r
            A(f"v_mul_f32 v{c}, v10, v{c}\nv_fma_f32 v{a}, v{a}, v11, -v{c}")
        for r in range(8): A(f"v_cvt_pk_bf16_f32 v{40+8*t+r}, v{64+16*t+2*r}, v{65+16*t+2*r}")
        for e in range(2): A(f"v_mfma_f32_32x32x16_bf16 v[{176+32*t+16*e}:{191+32*t+16*e}], v[{28+4*e}:{31+4*e}], v[{40+8*t+4*e}:{43+8*t+4*e}], 0")
    A("s_waitcnt lgkmcnt(0)")
    for r in range(16): A(f"v_mul_f32 v{144+r}, v12, v{144+r}\nv_fma_f32 v{96+r}, v{96+r}, v{160+r}, -v{144+r}")
    for r in range(8): A(f"v_cvt_pk_bf16_f32 v{40+r}, v{96+2*r}, v{97+2*r}")
    A("s_lshl_b32 s47, s22, 11\nv_add_u32 v23, s47, v25\nds_write_b128 v23, v[40:43] offset:53248\nds_write_b128 v23, v[44:47] offset:54272")
    def softmax(t):
        P=[176+32*t,192+32*t]; m=[(10,11,12),(13,14,15)]
        def both(f):
            a=f(0).split("\n"); b=f(1).split("\n")
            for x,y in zip(a,b): A(x); A(y)
        def mx(e):
            p=P[e]; a,b,c=m[e]
            return "\n".join([f"v_max3_f32 v{a}, v{p}, v{p+1}, v{p+2}",f"v_max3_f32 v{b}, v{p+8}, v{p+9}, v{p+10}",f"v_max3_f32 v{a}, v{a}, v{p+3}, v{p+4}",f"v_max3_f32 v{b}, v{b}, v{p+11}, v{p+12}",
              f"v_max3_f32 v{a}, v{a}, v{p+5}, v{p+6}",f"v_max3_f32 v{b}, v{b}, v{p+13}, v{p+14}",f"v_max_f32 v{a}, v{a}, v{p+7}",f"v_max_f32 v{b}, v{b}, v{p+15}",
              f"v_permlane32_swap_b32 v{a}, v{b}",f"v_max_f32 v{a}, v{a}, v{b}",f"v_mul_f32 v{a}, s58, v{a}",f"v_mov_b32 v{b}, v{a}",f"v_permlane32_swap_b32 v{a}, v{b}"])
        both(mx)
        both(lambda e:"\n".join(f"v_fma_f32 v{P[e]+r}, v{P[e]+r}, s58, -v{m[e][r>>3]}" for r in range(16)))
        both(lambda e:"\n".join(f"v_exp_f32 v{P[e]+r}, v{P[e]+r}" for r in range(16)))
        def sm(e):
            p=P[e]; a,b,c=m[e]; r=[f"v_add_f32 v{a}, v{p}, v{p+1}",f"v_add_f32 v{b}, v{p+8}, v{p+9}"]
            for i in range(2,8): r+=[f"v_add_f32 v{a}, v{a}, v{p+i}",f"v_add_f32 v{b}, v{b}, v{p+8+i}"]
            r+=[f"v_permlane32_swap_b32 v{a}, v{b}",f"v_add_f32 v{a}, v{a}, v{b}",f"v_rcp_f32 v{a}, v{a}",f"v_mov_b32 v{b}, v{a}",f"v_permlane32_swap_b32 v{a}, v{b}"]
            return "\n".join(r)
        both(sm)
        both(lambda e:"\n".join(f"v_mul_f32 v{P[e]+r}, v{P[e]+r}, v{m[e][r>>3]}" for r in range(16)))
        both(lambda e:"\n".join(f"v_cvt_pk_bf16_f32 v{48+8*e+r}, v{P[e]+2*r}, v{P[e]+2*r+1}" for r in range(8)))
    softmax(1)
    for e in range(2):
        for q in range(4): A(f"ds_write_b64 v24, v[{48+8*e+2*q}:{49+8*e+2*q}] offset:{16384+e*9216+16*q}")
    A("s_waitcnt lgkmcnt(0)\ns_barrier")
    A("s_cmp_ge_u32 s22, 4\ns_cbranch_scc1 Q_NOKV1")
    A("v_bfe_u32 v20, v1, 2, 2\nv_lshl_add_u32 v20, v26, 2, v20\nv_mul_u32_u24 v20, 72, v20\nv_bfe_u32 v21, v1, 4, 1\nv_lshl_add_u32 v20, v21, 5, v20\nv_and_b32 v22, 3, v1\nv_lshl_add_u32 v20, v22, 3, v20")
    A("s_mul_i32 s47, s22, 9216\nv_add_u32 v20, s47, v20\ns_lshr_b32 s47, s22, 1\ns_lshl_b32 s47, s47, 13\nv_add_u32 v22, s47, v25\ns_and_b32 s47, s22, 1\nv_cmp_ne_u32 s[62:63], s47, v21")
    for g in range(8):
        for rd in range(2): A(f"ds_read_b64_tr_b16 v[{64+4*g+2*rd}:{65+4*g+2*rd}], v20 offset:{16384+(16*g+8*rd)*72}")
        A(f"ds_read_b128 v[{112+4*g}:{115+4*g}], v22 offset:{53248+1024*g}")
    A("Q_NOKV1:")
    softmax(0)
    for e in range(2):
        for fr in range(2): A(f"buffer_store_dwordx4 v[{48+8*e+4*fr}:{51+8*e+4*fr}], v25, s[12:15], s57 offen offset:{e*2048+fr*1024}")
    A("s_cmp_ge_u32 s22, 4\ns_cbranch_scc1 Q_END\ns_waitcnt lgkmcnt(0)\nv_mov_b32 v20, 0x3f803f80")
    for g in range(8):
        for i in range(4): A(f"v_cndmask_b32 v{112+4*g+i}, v{112+4*g+i}, v20, s[62:63]")
    for g in range(8): A(f"v_mfma_f32_32x32x16_bf16 v[208:223], v[{64+4*g}:{67+4*g}], v[{112+4*g}:{115+4*g}], {'v[208:223]' if g else '0'}")
    A(f"s_lshl_b32 s47, s21, 2\ns_add_u32 s47, s47, s22\ns_lshl_b32 s47, s47, 4\ns_add_u32 s47, s47, s20\ns_lshl_b32 s47, s47, 12\ns_add_u32 s47, s47, {KVP_OFF}")
    for q in range(4): A(f"buffer_store_dwordx4 v[{208+4*q}:{211+4*q}], v25, s[12:15], s47 offen offset:{1024*q}")
    A("Q_END:"); st(3); flush(4,20,"s22"); A("s_endpgm")
    A("K1_H:")
    st(1)
    mainloop("H",False)
    C1=-2*0.7978845608028654*LOG2E
    A(f"s_lshl_b32 s47, s20, 2\ns_add_u32 s47, s47, s23\ns_mul_i32 s47, s47, 43\ns_mul_i32 s56, s49, 6\ns_add_u32 s56, s56, s24\ns_add_u32 s47, s47, s56\ns_lshl_b32 s57, s47, 11\nv_lshlrev_b32 v25, 4, v1\nv_mov_b32 v13, {f32(C1*0.044715)}")
    rdq(112,21,9216); rdq(128,21,10240)
    for t in range(3):
        b=112+32*(t&1); nb=112+32*((t+1)&1)
        A(f"s_cmp_ge_u32 s56, {43-2*t}\ns_cbranch_scc1 H_END")
        if t<2: rdq(nb,21,9216+256*(t+1)); rdq(nb+16,21,10240+256*(t+1)); A("s_waitcnt lgkmcnt(8)")
        else: A("s_waitcnt lgkmcnt(0)")
        a=64+16*t
        for h in range(2):
            R=range(8*h,8*h+8)
            for r in R: A(f"v_fma_f32 v{b+r}, -v10, v{b+r}, v{b+16+r}")
            for r in R: A(f"v_fma_f32 v{a+r}, v{a+r}, v11, v{b+r}")
            for r in R: A(f"v_mul_f32 v{b+r}, v{a+r}, v{a+r}")
            for r in R: A(f"v_fmaak_f32 v{b+r}, v{b+r}, v13, {f32(C1)}")
            for r in R: A(f"v_mul_f32 v{b+r}, v{b+r}, v{a+r}")
            for r in R: A(f"v_exp_f32 v{b+r}, v{b+r}")
            for r in R: A(f"v_add_f32 v{b+r}, 1.0, v{b+r}")
            for r in R: A(f"v_rcp_f32 v{b+r}, v{b+r}")
            for r in R: A(f"v_mul_f32 v{a+r}, v{a+r}, v{b+r}")
            for r in range(4): A(f"v_cvt_pk_bf16_f32 v{40+8*t+4*h+r}, v{a+8*h+2*r}, v{a+8*h+2*r+1}")
            A(f"buffer_store_dwordx4 v[{40+8*t+4*h}:{43+8*t+4*h}], v25, s[12:15], s57 offen offset:{1024*h}")
        A("s_add_u32 s57, s57, 4096")
    A("H_END:"); st(3); flush(4,20,"s22")
    A("K1_END:\ns_endpgm")
    return L
```

```python
from gen1 import *
def k2(STAMP=False,D=7,POLL=4):
    L=[]; A=L.append; vm=VM(A)
    st,flush=stamp_fns(A,STAMP,1,4)
    A("k2_kernel:")
    A("s_cmp_ge_u32 s2, 256\ns_cbranch_scc1 K2_END")
    st(0)
    A("s_load_dwordx2 s[36:37], s[0:1], 0\ns_load_dwordx2 s[38:39], s[0:1], 24\ns_load_dwordx4 s[40:43], s[0:1], 56\ns_load_dwordx4 s[44:47], s[0:1], 72\ns_load_dwordx2 s[48:49], s[0:1], 88")
    A("v_lshrrev_b32 v2, 6, v0\nv_and_b32 v1, 63, v0\nv_readfirstlane_b32 s50, v2")
    A("s_and_b32 s51, s2, 7\ns_lshr_b32 s52, s2, 3\ns_lshl_b32 s51, s51, 2\ns_lshr_b32 s53, s52, 3\ns_add_u32 s51, s51, s53\ns_and_b32 s52, s52, 7")
    A("s_lshr_b32 s53, s50, 1\ns_and_b32 s54, s50, 1")
    A("v_lshlrev_b32 v2, 4, v1")
    A("s_mul_i32 s55, s54, 88064\nv_add_u32 v3, s55, v2\ns_sub_u32 s55, 88064, s55\nv_add_u32 v4, s55, v2\ns_lshl_b32 s55, s54, 16\nv_add_u32 v5, s55, v2\ns_sub_u32 s55, 0x10000, s55\nv_add_u32 v6, s55, v2")
    A("s_mul_i32 s56, s51, 176128\ns_mul_i32 s55, s50, 22528\ns_add_u32 s56, s56, s55")
    A(f"s_lshl_b32 s57, s51, 17\ns_lshl_b32 s55, s50, 14\ns_add_u32 s57, s57, s55\ns_add_u32 s57, s57, {PQ_OFF}")
    A("v_lshrrev_b32 v8, 3, v1\nv_bfe_u32 v9, v1, 4, 1\nv_lshlrev_b32 v9, 2, v9\nv_and_b32 v10, 7, v1\nv_xor_b32 v9, v9, v10\nv_lshlrev_b32 v9, 4, v9\nv_lshl_add_u32 v7, v8, 10, v9\ns_lshl_b32 s55, s52, 7\nv_add_u32 v7, s55, v7")
    A(f"s_mul_i32 s58, s50, {11*32768}\ns_lshl_b32 s59, s50, 17\ns_mul_i32 s61, s50, {D*4096}")
    A("s_waitcnt lgkmcnt(0)")
    srd(A,4,40,1376*1024); srd(A,8,38,512*1024); srd(A,12,48,WS_SIZE); srd(A,16,48,64*43*2048); srd(A,20,36,2048*1024); srd(A,24,44,2048*1024); srd(A,28,42,1024); srd(A,32,46,256)
    A("s_cmp_lt_u32 s2, 64\ns_cselect_b32 s62, s50, 0\ns_cmp_eq_u32 s62, 3\ns_cselect_b32 s62, 1, 0")
    def unit_ops(u):
        r=[]; sl=u%D; B=16*sl
        if u<11:
            for i in range(2):
                for fr in range(2): r.append((f"buffer_load_dwordx4 a[{B+8*i+4*fr}:{B+8*i+4*fr+3}], v{3+i}, s[16:19], s56 offen offset:{1024*fr}",u))
            r[-1]=(r[-1][0]+"\ns_add_u32 s56, s56, 2048",u)
            for p in range(4): r.append((f"s_add_u32 m0, s61, {sl*4096+p*1024}\ns_nop 0\nbuffer_load_dwordx4 v7, s[4:7], s58 offen lds\ns_add_u32 s58, s58, 8192",u))
        elif u<19:
            for i in range(2):
                for fr in range(2): r.append((f"buffer_load_dwordx4 a[{B+8*i+4*fr}:{B+8*i+4*fr+3}], v{5+i}, s[12:15], s57 offen offset:{1024*fr}",u))
            r[-1]=(r[-1][0]+"\ns_add_u32 s57, s57, 2048",u)
            for p in range(2): r.append((f"s_add_u32 m0, s61, {sl*4096+p*1024}\ns_nop 0\nbuffer_load_dwordx4 v7, s[8:11], s59 offen lds\ns_add_u32 s59, s59, 8192",u))
        return r
    A("s_cmp_eq_u32 s62, 0\ns_cbranch_scc1 K2_NR1")
    A(f"s_lshr_b32 s55, s2, 1\ns_lshl_b32 s55, s55, 16\ns_and_b32 s63, s2, 1\ns_lshl_b32 s63, s63, 11\ns_add_u32 s55, s55, s63\ns_add_u32 s55, s55, {KVP_OFF}")
    for rb in range(16):
        for q in range(2): vm.issue(f"buffer_load_dwordx4 v[{64+8*rb+4*q}:{67+8*rb+4*q}], v2, s[12:15], s55 offen offset:{1024*q}","red",True)
        A("s_add_u32 s55, s55, 4096")
    A("K2_NR1:")
    for u in range(3):
        for l,t in unit_ops(u): vm.issue(l,t)
    A("s_cmp_eq_u32 s62, 0\ns_cbranch_scc1 K2_NR2")
    vm.wait("red")
    n=16
    while n>1:
        n//=2
        for k in range(n):
            for r in range(8): A(f"v_add_f32 v{64+8*k+r}, v{64+8*k+r}, v{64+8*(k+n)+r}")
    for r in range(4): A(f"v_cvt_pk_bf16_f32 v{72+r}, v{64+2*r}, v{65+2*r}")
    A(f"s_lshl_b32 s55, s2, 10\ns_add_u32 s55, s55, {KVF_OFF}")
    vm.issue("buffer_store_dwordx4 v[72:75], v2, s[12:15], s55 offen sc1","rs",True)
    A("K2_NR2:")
    for u in range(3,D-1):
        for l,t in unit_ops(u): vm.issue(l,t)
    A("v_lshrrev_b32 v12, 5, v1\nv_bfe_u32 v8, v1, 2, 2\nv_lshl_add_u32 v8, v12, 2, v8\nv_lshlrev_b32 v8, 7, v8\nv_and_b32 v9, 1, v1\nv_lshl_add_u32 v8, v9, 3, v8\nv_add_u32 v8, s61, v8")
    A("v_bfe_u32 v9, v1, 4, 1\nv_bfe_u32 v10, v1, 1, 1\nv_lshl_add_u32 v9, v9, 1, v10\nv_bfe_u32 v10, v1, 3, 1\nv_xor_b32 v10, s53, v10\nv_lshl_add_u32 v9, v10, 2, v9\nv_lshlrev_b32 v10, 4, v9\nv_xor_b32 v9, 64, v10\nv_add_u32 v9, v9, v8\nv_add_u32 v8, v10, v8")
    A("s_lshl_b32 s55, s51, 1\ns_add_u32 s55, s55, s54\ns_lshl_b32 s55, s55, 15\nv_and_b32 v11, 31, v1\nv_lshlrev_b32 v11, 10, v11\nv_add_u32 v11, s55, v11\ns_lshl_b32 s55, s52, 7\ns_lshl_b32 s63, s53, 6\ns_add_u32 s55, s55, s63\nv_lshlrev_b32 v13, 3, v12\nv_add_u32 v13, s55, v13\nv_add_u32 v11, v11, v13")
    A("s_cmp_eq_u32 s62, 0\ns_cbranch_scc1 K2_NR3")
    q0=list(vm.q); vm.wait("rs"); vm.q=q0
    A("v_mov_b32 v14, 0\nv_mov_b32 v15, 1\ns_mov_b64 exec, 1")
    vm.issue("buffer_atomic_add v15, v14, s[32:35], 0 offen sc1","at",True)
    A("s_mov_b64 exec, -1\nK2_NR3:")
    AF=[192,208]
    def trs(u):
        r=[]; sl=u%D; F=AF[u&1]
        for j in range(2 if u<11 else 1):
            for a in range(2):
                for rd in range(2): r.append(f"ds_read_b64_tr_b16 v[{F+8*j+4*a+2*rd}:{F+8*j+4*a+2*rd+1}], v{8+a} offset:{sl*4096+j*2048+rd*1024}")
        return r
    def acc(a,i): return f"v[{64+32*a+16*i}:{79+32*a+16*i}]"
    def nm(u):
        B=16*(u%D); hd=u-11; N=128+32*(u&1); r=[]
        for fr in range(2):
            for i in range(2): r.append(f"v_mfma_f32_32x32x16_bf16 v[{N+16*i}:{N+16*i+15}], a[{128+8*hd+4*fr}:{131+8*hd+4*fr}], a[{B+8*i+4*fr}:{B+8*i+4*fr+3}], {'0' if fr==0 else f'v[{N+16*i}:{N+16*i+15}]'}")
        return r
    vm.wait(0)
    for x in trs(0): A(x)
    st(1)
    A(f"s_mov_b32 s63, {f32(1e-6)}")
    for u in range(19):
        nxt=unit_ops(u+D-1)
        if u==POLL+1:
            A("s_waitcnt lgkmcnt(0)\ns_cmp_ge_u32 s3, 64\ns_cbranch_scc1 K2_GO\nv_mov_b32 v14, 0\ns_mov_b32 s55, 0\nK2_SPIN:\nbuffer_load_dword v15, v14, s[32:35], 0 offen sc1\ns_waitcnt vmcnt(0)\nv_readfirstlane_b32 s3, v15\ns_add_u32 s55, s55, 1\ns_cmp_lt_u32 s3, 64\ns_cbranch_scc0 K2_GO\ns_cmp_lt_u32 s55, 0x100000\ns_cbranch_scc1 K2_SPIN\nK2_GO:")
            A(f"s_lshl_b32 s55, s50, 14\ns_add_u32 s55, s55, {KVF_OFF}")
            kv=[]
            for hd in range(8):
                for fr in range(2): kv.append((f"buffer_load_dwordx4 a[{128+8*hd+4*fr}:{131+8*hd+4*fr}], v2, s[12:15], s55 offen offset:{(hd&1)*2048+fr*1024} sc1"+("\ns_add_u32 s55, s55, 4096" if (hd&1 and fr) else ""),"kv"))
            nxt=nxt+kv
        if u==12:
            nxt=nxt+[(f"buffer_load_dwordx2 v[{232+2*q}:{233+2*q}], v11, s[20:23], 0 offen offset:{16*q}","x") for q in range(4)]+[(f"buffer_load_dwordx2 v[{240+2*q}:{241+2*q}], v13, s[28:31], 0 offen offset:{16*q}","x") for q in range(4)]
        if u+1<19:
            vm.wait(u+1)
            if u+1==11: vm.wait("kv")
        nr=trs(u+1) if u+1<19 else []
        A(f"s_waitcnt lgkmcnt(0)")
        for x in nr: A(x)
        if u==POLL: A("s_load_dword s3, s[46:47], 0 glc")
        F=AF[u&1]; B=16*(u%D); ms=[]
        if u<11:
            for j in range(2):
                for a in range(2):
                    for i in range(2): ms.append(f"v_mfma_f32_32x32x16_bf16 {acc(a,i)}, v[{F+8*j+4*a}:{F+8*j+4*a+3}], a[{B+8*i+4*j}:{B+8*i+4*j+3}], {acc(a,i) if (u or j) else '0'}")
            if u==10: ms+=nm(11)
        else:
            if u+1<19: ms+=nm(u+1)
            N=128+32*(u&1); odd=(u-11)&1; v=[]
            for i in range(2):
                nb_=N+16*i+(8 if odd else 0); dn=N+16*i+(0 if odd else 8)
                v.append(f"v_add_f32 v{14+i}, s63, v{dn}")
            for i in range(2): v.append(f"v_rcp_f32 v{14+i}, v{14+i}")
            for i in range(2):
                nb_=N+16*i+(8 if odd else 0)
                for r in range(8): v.append(f"v_mul_f32 v{nb_+r}, v{nb_+r}, v{14+i}")
                for r in range(4): v.append(f"v_cvt_pk_bf16_f32 v{224+4*i+r}, v{nb_+2*r}, v{nb_+2*r+1}")
            if ms:
                k=len(v)//4
                for i in range(4): ms[i]+="\n"+"\n".join(v[i*k:(i+1)*k if i<3 else 99])
            else: ms.append("\n".join(v))
            for i in range(2):
                for a in range(2): ms.append(f"v_mfma_f32_32x32x16_bf16 {acc(a,i)}, v[{F+4*a}:{F+4*a+3}], v[{224+4*i}:{227+4*i}], {acc(a,i)}")
        per=-(-len(nxt)//len(ms))
        for k,m in enumerate(ms):
            A(m)
            for l,t in nxt[k*per:(k+1)*per]: vm.issue(l,t)
    st(2)
    A("v_add_u32 v14, s61, v2")
    for i in range(1,4):
        b=64+32*(i>>1)+16*(i&1)
        for q in range(4): A(f"ds_write_b128 v14, v[{b+4*q}:{b+4*q+3}] offset:{(i-1)*4096+q*1024}")
    for i in range(1,4): A(f"s_xor_b32 s55, s50, {i}\ns_mul_i32 s55, s55, {D*4096}\nv_add_u32 v{14+i}, s55, v2")
    vm.wait("x")
    for q in range(4):
        for k,(src) in enumerate((232+2*q,233+2*q)):
            A(f"v_lshlrev_b32 v18, 16, v{src}\nv_and_b32 v19, 0xffff0000, v{src}\nv_lshlrev_b32 v20, 16, v{src+8}\nv_and_b32 v21, 0xffff0000, v{src+8}\nv_add_f32 v18, v18, v20\nv_add_f32 v19, v19, v21\nv_add_f32 v{64+4*q+2*k}, v{64+4*q+2*k}, v18\nv_add_f32 v{65+4*q+2*k}, v{65+4*q+2*k}, v19")
    A("s_waitcnt lgkmcnt(0)\ns_barrier")
    for i in range(1,4):
        for q in range(4): A(f"ds_read_b128 v[{128+16*(i-1)+4*q}:{131+16*(i-1)+4*q}], v{14+i} offset:{(i-1)*4096+q*1024}")
    A("v_lshl_add_u32 v11, v12, 3, v11")
    for i in range(3):
        A(f"s_waitcnt lgkmcnt({8-4*i})")
        for r in range(16): A(f"v_add_f32 v{64+r}, v{64+r}, v{128+16*i+r}")
    for r in range(8): A(f"v_cvt_pk_bf16_f32 v{80+r}, v{64+2*r}, v{65+2*r}")
    for p in range(2):
        A(f"v_permlane32_swap_b32 v{80+4*p}, v{82+4*p}\nv_permlane32_swap_b32 v{81+4*p}, v{83+4*p}")
    for p in range(2): A(f"buffer_store_dwordx4 v[{80+4*p}:{83+4*p}], v11, s[24:27], 0 offen offset:{32*p}")
    st(3); flush(4,20,"s50")
    A("K2_END:\ns_endpgm")
    return L
```

```python
import sys
from gen2 import *
o=dict(a.split("=") if "=" in a else (a,"1") for a in sys.argv[1:])
ST="stamp" in o; D=int(o.get("D",7))
hdr=open("parallel_sum__linear_kernel_hedgehog__mixer_channel_mlp__prompt.s.ref").read().split("; Override")[0]
out=[hdr.rstrip(),"; Generated by hand-written generator scripts (two kernels: k1 = LN+QKV/MLP-up GEMM+features+kv partials, k2 = kv reduce + attention + down GEMM)",
 "; @launch kernel=k1_kernel grid=(256,1,1) block=(512,1,1) lds=163840",
 f"; @launch kernel=k2_kernel grid=(256,1,1) block=(256,1,1) lds={D*16384}",
 '.amdgcn_target "amdgcn-amd-amdhsa--gfx950"','.text']
for n,f in (("k1_kernel",k1(ST)),("k2_kernel",k2(ST,D,int(o.get("POLL",4))))):
    out+=[f".globl {n}",".p2align 8",f".type {n},@function"]+pad(f)
out+=['.section .rodata,"a"','.p2align 6',kdesc("k1_kernel",240,240),'.p2align 6',kdesc("k2_kernel",448,256)]
print("\n".join(out))
```

```python
from gen1 import *
def k2(STAMP=False,D=7,POLL=4):
    L=[]; A=L.append; vm=VM(A)
    st,flush=stamp_fns(A,STAMP,1,4)
    A("k2_kernel:")
    A("s_cmp_ge_u32 s2, 256\ns_cbranch_scc1 K2_END")
    st(0)
    A("s_load_dwordx2 s[36:37], s[0:1], 0\ns_load_dwordx2 s[38:39], s[0:1], 24\ns_load_dwordx4 s[40:43], s[0:1], 56\ns_load_dwordx4 s[44:47], s[0:1], 72\ns_load_dwordx2 s[48:49], s[0:1], 88")
    A("v_lshrrev_b32 v2, 6, v0\nv_and_b32 v1, 63, v0\nv_readfirstlane_b32 s50, v2")
    A("s_and_b32 s51, s2, 7\ns_lshr_b32 s52, s2, 3\ns_lshl_b32 s51, s51, 2\ns_lshr_b32 s53, s52, 3\ns_add_u32 s51, s51, s53\ns_and_b32 s52, s52, 7")
    A("s_lshr_b32 s53, s50, 1\ns_and_b32 s54, s50, 1")
    A("v_lshlrev_b32 v2, 4, v1")
    A("s_mul_i32 s55, s54, 88064\nv_add_u32 v3, s55, v2\ns_sub_u32 s55, 88064, s55\nv_add_u32 v4, s55, v2\ns_lshl_b32 s55, s54, 16\nv_add_u32 v5, s55, v2\ns_sub_u32 s55, 0x10000, s55\nv_add_u32 v6, s55, v2")
    A("s_mul_i32 s56, s51, 176128\ns_mul_i32 s55, s50, 22528\ns_add_u32 s56, s56, s55")
    A(f"s_lshl_b32 s57, s51, 17\ns_lshl_b32 s55, s50, 14\ns_add_u32 s57, s57, s55\ns_add_u32 s57, s57, {PQ_OFF}")
    A("v_lshrrev_b32 v8, 3, v1\nv_bfe_u32 v9, v1, 4, 1\nv_lshlrev_b32 v9, 2, v9\nv_and_b32 v10, 7, v1\nv_xor_b32 v9, v9, v10\nv_lshlrev_b32 v9, 4, v9\nv_lshl_add_u32 v7, v8, 10, v9\ns_lshl_b32 s55, s52, 7\nv_add_u32 v7, s55, v7")
    A(f"s_mul_i32 s58, s50, {11*32768}\ns_lshl_b32 s59, s50, 17\ns_mul_i32 s61, s50, {D*4096}")
    A("s_waitcnt lgkmcnt(0)")
    srd(A,4,40,1376*1024); srd(A,8,38,512*1024); srd(A,12,48,WS_SIZE); srd(A,16,48,64*43*2048); srd(A,20,36,2048*1024); srd(A,24,44,2048*1024); srd(A,28,42,1024)
    A("s_cmp_lt_u32 s2, 64\ns_cselect_b32 s62, s50, 0\ns_cmp_eq_u32 s62, 3\ns_cselect_b32 s62, 1, 0")
    def unit_ops(u):
        r=[]; sl=u%D; B=16*sl
        if u<11:
            for i in range(2):
                for fr in range(2): r.append((f"buffer_load_dwordx4 a[{B+8*i+4*fr}:{B+8*i+4*fr+3}], v{3+i}, s[16:19], s56 offen offset:{1024*fr}",u))
            r[-1]=(r[-1][0]+"\ns_add_u32 s56, s56, 2048",u)
            for p in range(4): r.append((f"s_add_u32 m0, s61, {sl*4096+p*1024}\ns_nop 0\nbuffer_load_dwordx4 v7, s[4:7], s58 offen lds\ns_add_u32 s58, s58, 8192",u))
        elif u<19:
            for i in range(2):
                for fr in range(2): r.append((f"buffer_load_dwordx4 a[{B+8*i+4*fr}:{B+8*i+4*fr+3}], v{5+i}, s[12:15], s57 offen offset:{1024*fr}",u))
            r[-1]=(r[-1][0]+"\ns_add_u32 s57, s57, 2048",u)
            for p in range(2): r.append((f"s_add_u32 m0, s61, {sl*4096+p*1024}\ns_nop 0\nbuffer_load_dwordx4 v7, s[8:11], s59 offen lds\ns_add_u32 s59, s59, 8192",u))
        return r
    A("s_cmp_eq_u32 s62, 0\ns_cbranch_scc1 K2_NR1")
    A(f"s_lshr_b32 s55, s2, 1\ns_lshl_b32 s55, s55, 16\ns_and_b32 s63, s2, 1\ns_lshl_b32 s63, s63, 11\ns_add_u32 s55, s55, s63\ns_add_u32 s55, s55, {KVP_OFF}")
    for rb in range(16):
        for q in range(2): vm.issue(f"buffer_load_dwordx4 v[{64+8*rb+4*q}:{67+8*rb+4*q}], v2, s[12:15], s55 offen offset:{1024*q}","red",True)
        A("s_add_u32 s55, s55, 4096")
    A("K2_NR1:")
    for u in range(3):
        for l,t in unit_ops(u): vm.issue(l,t)
    A("s_cmp_eq_u32 s62, 0\ns_cbranch_scc1 K2_NR2")
    vm.wait("red")
    n=16
    while n>1:
        n//=2
        for k in range(n):
            for r in range(8): A(f"v_add_f32 v{64+8*k+r}, v{64+8*k+r}, v{64+8*(k+n)+r}")
    for r in range(4): A(f"v_cvt_pk_bf16_f32 v{72+r}, v{64+2*r}, v{65+2*r}")
    A(f"s_lshl_b32 s55, s2, 10\ns_add_u32 s55, s55, {KVF_OFF}")
    vm.issue("buffer_store_dwordx4 v[72:75], v2, s[12:15], s55 offen sc1","rs",True)
    A("K2_NR2:")
    for u in range(3,D-1):
        for l,t in unit_ops(u): vm.issue(l,t)
    A("v_lshrrev_b32 v12, 5, v1\nv_bfe_u32 v8, v1, 2, 2\nv_lshl_add_u32 v8, v12, 2, v8\nv_lshlrev_b32 v8, 7, v8\nv_and_b32 v9, 1, v1\nv_lshl_add_u32 v8, v9, 3, v8\nv_add_u32 v8, s61, v8")
    A("v_bfe_u32 v9, v1, 4, 1\nv_bfe_u32 v10, v1, 1, 1\nv_lshl_add_u32 v9, v9, 1, v10\nv_bfe_u32 v10, v1, 3, 1\nv_xor_b32 v10, s53, v10\nv_lshl_add_u32 v9, v10, 2, v9\nv_lshlrev_b32 v10, 4, v9\nv_xor_b32 v9, 64, v10\nv_add_u32 v9, v9, v8\nv_add_u32 v8, v10, v8")
    A("s_lshl_b32 s55, s51, 1\ns_add_u32 s55, s55, s54\ns_lshl_b32 s55, s55, 15\nv_and_b32 v11, 31, v1\nv_lshlrev_b32 v11, 10, v11\nv_add_u32 v11, s55, v11\ns_lshl_b32 s55, s52, 7\ns_lshl_b32 s63, s53, 6\ns_add_u32 s55, s55, s63\nv_lshlrev_b32 v13, 3, v12\nv_add_u32 v13, s55, v13\nv_add_u32 v11, v11, v13")
    AF=[192,208]
    def trs(u):
        r=[]; sl=u%D; F=AF[u&1]
        for j in range(2 if u<11 else 1):
            for a in range(2):
                for rd in range(2): r.append(f"ds_read_b64_tr_b16 v[{F+8*j+4*a+2*rd}:{F+8*j+4*a+2*rd+1}], v{8+a} offset:{sl*4096+j*2048+rd*1024}")
        return r
    def acc(a,i): return f"a[{128+32*a+16*i}:{143+32*a+16*i}]"
    def nm(u):
        B=16*(u%D); hd=u-11; N=128+32*(u&1); r=[]
        for fr in range(2):
            for i in range(2): r.append(f"v_mfma_f32_32x32x16_bf16 v[{N+16*i}:{N+16*i+15}], v[{64+8*hd+4*fr}:{67+8*hd+4*fr}], a[{B+8*i+4*fr}:{B+8*i+4*fr+3}], {'0' if fr==0 else f'v[{N+16*i}:{N+16*i+15}]'}")
        return r
    vm.wait(0)
    for x in trs(0): A(x)
    st(1)
    A(f"s_mov_b32 s63, {f32(1e-6)}")
    for u in range(19):
        nxt=unit_ops(u+D-1)
        def kvl(sc):
            kv=[]
            for hd in range(8):
                for fr in range(2): kv.append((f"buffer_load_dwordx4 v[{64+8*hd+4*fr}:{67+8*hd+4*fr}], v{22+(hd>>1)}, s[12:15], s3 offen offset:{(hd&1)*2048+fr*1024}{sc}","kv"))
            return kv
        if u==POLL:
            A(f"s_lshl_b32 s3, s50, 14\ns_add_u32 s3, s3, {KVF_OFF}\nv_mov_b32 v22, v2\nv_add_u32 v23, 4096, v2\nv_add_u32 v24, 8192, v2\nv_add_u32 v25, 12288, v2")
            nxt=nxt+kvl("")
        if u==12:
            nxt=nxt+[(f"buffer_load_dwordx2 v[{232+2*q}:{233+2*q}], v11, s[20:23], 0 offen offset:{16*q}","x") for q in range(4)]+[(f"buffer_load_dwordx2 v[{240+2*q}:{241+2*q}], v13, s[28:31], 0 offen offset:{16*q}","x") for q in range(4)]
        if u+1<19:
            vm.wait(u+1)
            if u+1==11:
                vm.wait("kv")
                A("s_mov_b32 s55, 0\nK2_CHK:\nv_max3_u32 v14, v64, v65, v66\nv_max3_u32 v15, v67, v68, v69")
                for r in range(70,126,4): A(f"v_max3_u32 v14, v14, v{r}, v{r+1}\nv_max3_u32 v15, v15, v{r+2}, v{r+3}")
                A("v_max3_u32 v14, v14, v126, v127\nv_max_u32 v14, v14, v15\nv_cmp_eq_u32 vcc, -1, v14\ns_cbranch_vccz K2_GO\ns_add_u32 s55, s55, 1\ns_cmp_gt_u32 s55, 0x10000\ns_cbranch_scc1 K2_GO\ns_sleep 8")
                for l,t in kvl(" sc1"): A(l)
                A("s_waitcnt vmcnt(0)\ns_branch K2_CHK\nK2_GO:")
        nr=trs(u+1) if u+1<19 else []
        A(f"s_waitcnt lgkmcnt(0)")
        for x in nr: A(x)
        F=AF[u&1]; B=16*(u%D); ms=[]
        if u<11:
            for j in range(2):
                for a in range(2):
                    for i in range(2): ms.append(f"v_mfma_f32_32x32x16_bf16 {acc(a,i)}, v[{F+8*j+4*a}:{F+8*j+4*a+3}], a[{B+8*i+4*j}:{B+8*i+4*j+3}], {acc(a,i) if (u or j) else '0'}")
            if u==10: ms+=nm(11)
        else:
            if u+1<19: ms+=nm(u+1)
            N=128+32*(u&1); odd=(u-11)&1; v=[]
            for i in range(2):
                nb_=N+16*i+(8 if odd else 0); dn=N+16*i+(0 if odd else 8)
                v.append(f"v_add_f32 v{14+i}, s63, v{dn}")
            for i in range(2): v.append(f"v_rcp_f32 v{14+i}, v{14+i}")
            for i in range(2):
                nb_=N+16*i+(8 if odd else 0)
                for r in range(8): v.append(f"v_mul_f32 v{nb_+r}, v{nb_+r}, v{14+i}")
                for r in range(4): v.append(f"v_cvt_pk_bf16_f32 v{224+4*i+r}, v{nb_+2*r}, v{nb_+2*r+1}")
            if ms:
                k=len(v)//4
                for i in range(4): ms[i]+="\n"+"\n".join(v[i*k:(i+1)*k if i<3 else 99])
            else: ms.append("\n".join(v))
            for i in range(2):
                for a in range(2): ms.append(f"v_mfma_f32_32x32x16_bf16 {acc(a,i)}, v[{F+4*a}:{F+4*a+3}], v[{224+4*i}:{227+4*i}], {acc(a,i)}")
        per=-(-len(nxt)//len(ms))
        for k,m in enumerate(ms):
            A(m)
            for l,t in nxt[k*per:(k+1)*per]: vm.issue(l,t)
    st(2)
    A("v_add_u32 v14, s61, v2")
    for i in range(1,4):
        b=128+32*(i>>1)+16*(i&1)
        for q in range(4): A(f"ds_write_b128 v14, a[{b+4*q}:{b+4*q+3}] offset:{(i-1)*4096+q*1024}")
    for i in range(1,4): A(f"s_xor_b32 s55, s50, {i}\ns_mul_i32 s55, s55, {D*4096}\nv_add_u32 v{14+i}, s55, v2")
    for r in range(16): A(f"v_accvgpr_read_b32 v{64+r}, a{128+r}")
    vm.wait("x")
    for q in range(4):
        for k,(src) in enumerate((232+2*q,233+2*q)):
            A(f"v_lshlrev_b32 v18, 16, v{src}\nv_and_b32 v19, 0xffff0000, v{src}\nv_lshlrev_b32 v20, 16, v{src+8}\nv_and_b32 v21, 0xffff0000, v{src+8}\nv_add_f32 v18, v18, v20\nv_add_f32 v19, v19, v21\nv_add_f32 v{64+4*q+2*k}, v{64+4*q+2*k}, v18\nv_add_f32 v{65+4*q+2*k}, v{65+4*q+2*k}, v19")
    A("s_waitcnt lgkmcnt(0)\ns_barrier")
    for i in range(1,4):
        for q in range(4): A(f"ds_read_b128 v[{128+16*(i-1)+4*q}:{131+16*(i-1)+4*q}], v{14+i} offset:{(i-1)*4096+q*1024}")
    A("v_lshl_add_u32 v11, v12, 3, v11")
    for i in range(3):
        A(f"s_waitcnt lgkmcnt({8-4*i})")
        for r in range(16): A(f"v_add_f32 v{64+r}, v{64+r}, v{128+16*i+r}")
    for r in range(8): A(f"v_cvt_pk_bf16_f32 v{80+r}, v{64+2*r}, v{65+2*r}")
    for p in range(2):
        A(f"v_permlane32_swap_b32 v{80+4*p}, v{82+4*p}\nv_permlane32_swap_b32 v{81+4*p}, v{83+4*p}")
    for p in range(2): A(f"buffer_store_dwordx4 v[{80+4*p}:{83+4*p}], v11, s[24:27], 0 offen offset:{32*p}")
    st(3); flush(4,20,"s50")
    A("K2_END:\ns_endpgm")
    return L
```

```python
from asmlib import *
H_OFF=0; PQ_OFF=0x600000; KVP_OFF=0xA00000; KVF_OFF=0xC00000; ST_OFF=0x2000000
WS_SIZE=0x3000000
LOG2E=1.4426950408889634
import struct
def f32(x): return "0x%08x"%struct.unpack("<I",struct.pack("<f",x))[0]
def stamp_fns(A,on,kidx,nw,lv=9):
    def st(i):
        if on: A(f"s_memrealtime s[{64+2*i}:{65+2*i}]")
        if on and i in (0,3): A(f"s_memtime s[{82+i+i%2}:{83+i+i%2}]")
    def flush(n,tmp,wreg):
        if not on: return
        A("s_waitcnt lgkmcnt(0)")
        A(f"s_lshl_b32 s60, s2, 3\ns_add_u32 s60, s60, {wreg}\ns_lshl_b32 s60, s60, 6\ns_add_u32 s60, s60, {ST_OFF+kidx*0x40000}")
        A(f"v_mov_b32 v{tmp+1}, 0\ns_sub_u32 s82, s86, s82\nv_writelane_b32 v{lv}, s82, 11")
        for i in range(n): A(f"v_mov_b32 v{tmp}, s{64+2*i}\nbuffer_store_dword v{tmp}, v{tmp+1}, s[12:15], s60 offen offset:{4*i}")
        A(f"s_mov_b64 exec, 0xfff\nv_lshlrev_b32 v{tmp}, 2, v1\nbuffer_store_dword v{lv}, v{tmp}, s[12:15], s60 offen offset:16")
    return st,flush
def srd(A,r,ptr,size): A(f"s_mov_b32 s{r}, s{ptr}\ns_mov_b32 s{r+1}, s{ptr+1}\ns_mov_b32 s{r+2}, {size}\ns_mov_b32 s{r+3}, 0x20000")
def k1(STAMP=False,O={}):
    L=[]; A=L.append; SC=" "+O.get("SC","").replace("_"," ")
    st,flush=stamp_fns(A,STAMP,0,8)
    A("k1_kernel:")
    A("s_cmp_ge_u32 s2, 256\ns_cbranch_scc1 K1_END")
    st(0)
    A("s_load_dwordx4 s[32:35], s[0:1], 0\ns_load_dwordx2 s[36:37], s[0:1], 16\ns_load_dwordx4 s[40:43], s[0:1], 40\ns_load_dwordx2 s[44:45], s[0:1], 88")
    A("v_lshrrev_b32 v20, 6, v0\nv_and_b32 v1, 63, v0\nv_readfirstlane_b32 s22, v20")
    A("s_and_b32 s31, s2, 7\ns_lshr_b32 s38, s2, 3\ns_and_b32 s20, s31, 1\ns_lshl_b32 s20, s20, 3\ns_lshr_b32 s39, s38, 2\ns_add_u32 s20, s20, s39")
    A("s_lshr_b32 s21, s31, 1\ns_and_b32 s39, s38, 3\ns_lshl_b32 s39, s39, 2\ns_add_u32 s21, s21, s39")
    A("s_and_b32 s23, s22, 3\ns_lshr_b32 s24, s22, 2\ns_xor_b32 s46, s23, s24")
    A("v_lshrrev_b32 v20, 3, v1\nv_lshrrev_b32 v21, 4, v1\nv_and_b32 v22, 7, v1")
    A("s_lshl_b32 s39, s20, 7\ns_lshl_b32 s47, s22, 4\ns_add_u32 s39, s39, s47\nv_add_u32 v23, s39, v20\nv_lshlrev_b32 v23, 10, v23")
    A("v_xor_b32 v24, v22, v21\nv_lshl_add_u32 v2, v24, 4, v23\nv_xor_b32 v24, 4, v24\nv_lshl_add_u32 v3, v24, 4, v23\nv_add_u32 v3, 0x2000, v3")
    A("v_and_b32 v24, 1, v21\nv_lshlrev_b32 v24, 2, v24\nv_xor_b32 v24, v22, v24\nv_lshlrev_b32 v24, 4, v24\ns_lshl_b32 s47, s22, 3\nv_add_u32 v25, s47, v20")
    A("v_lshrrev_b32 v26, 5, v1\nv_and_b32 v27, 31, v1\ns_waitcnt lgkmcnt(0)")
    srd(A,4,32,2048*1024); srd(A,12,44,WS_SIZE)
    A(f"s_cmp_ge_u32 s2, 8\ns_cbranch_scc1 K1_NOS\ns_lshl_b32 s47, s2, 13\ns_add_u32 s47, s47, {KVF_OFF}\nv_lshlrev_b32 v28, 4, v0\nv_mov_b32 v64, -1\nv_mov_b32 v65, -1\nv_mov_b32 v66, -1\nv_mov_b32 v67, -1\nbuffer_store_dwordx4 v[64:67], v28, s[12:15], s47 offen\nK1_NOS:")
    A("s_cmp_ge_u32 s21, 8\ns_cbranch_scc1 K1_HSET")
    srd(A,8,34,512*3072); srd(A,16,36,32*512)
    A("s_lshl_b32 s47, s21, 2\ns_lshl_b32 s53, s24, 1\ns_add_u32 s56, s47, s53\ns_lshl_b32 s47, s56, 9\nv_and_b32 v20, 15, v1\nv_lshlrev_b32 v20, 1, v20\nv_lshl_add_u32 v20, v26, 7, v20")
    for e in range(2):
        for i in range(8):
            d=(i&3)+8*(i>>2)
            A(f"buffer_load_ushort v{176+8*e+i}, v20, s[16:19], s47 offen offset:{e*512+d*32}")
    A("s_movk_i32 s48, 3072\ns_movk_i32 s29, 1024\ns_lshl_b32 s28, s21, 7\ns_branch K1_SET")
    A("K1_HSET:")
    srd(A,8,40,512*2752); srd(A,16,42,2752)
    A("s_movk_i32 s48, 2752\ns_movk_i32 s29, 128\ns_sub_u32 s49, s21, 8\ns_mul_i32 s28, s49, 384")
    A("v_subrev_u32 v20, 128, v0\nv_lshlrev_b32 v20, 1, v20\ns_mul_i32 s47, s49, 384\nv_add_u32 v20, s47, v20\nbuffer_load_ushort v28, v20, s[16:19], 0 offen")
    A("K1_SET:")
    A("v_mul_lo_u32 v4, s48, v25\nv_add_u32 v4, v4, v24\ns_lshl_b32 s30, s48, 6\ns_mov_b32 s27, 0")
    A("s_lshl_b32 s50, s22, 11\ns_lshl_b32 s51, s22, 10\ns_add_u32 s51, s51, 16384\ns_mov_b32 s26, 0")
    def dma_list():
        r=[]
        r.append("s_add_u32 m0, s26, s50\ns_add_u32 s53, s28, s29\nbuffer_load_dwordx4 v2, s[4:7], s27 offen lds")
        r.append("s_add_u32 m0, m0, 1024\ns_add_u32 s54, s53, s29\nbuffer_load_dwordx4 v3, s[4:7], s27 offen lds")
        r.append("s_add_u32 m0, s26, s51\ns_add_u32 s27, s27, 128\nbuffer_load_dwordx4 v4, s[8:11], s28 offen lds")
        r.append("s_add_u32 m0, m0, 8192\ns_add_u32 s28, s28, s30\nbuffer_load_dwordx4 v4, s[8:11], s53 offen lds")
        r.append("s_add_u32 m0, m0, 8192\ns_add_u32 s26, s26, 40960\nbuffer_load_dwordx4 v4, s[8:11], s54 offen lds")
        return r
    for s in range(3):
        for d in dma_list(): A(d)
    A("s_lshl_b32 s47, s23, 5\nv_add_u32 v20, s47, v27")
    A("v_bfe_u32 v21, v20, 1, 3\nv_xor_b32 v21, v21, v26\nv_lshlrev_b32 v20, 7, v20")
    for j in range(4):
        A(f"s_xor_b32 s47, s46, {j}\ns_lshl_b32 s47, s47, 1\nv_xor_b32 v22, s47, v21\nv_lshl_add_u32 v{5+j}, v22, 4, v20")
    A("v_bfe_u32 v20, v1, 2, 2\nv_lshl_add_u32 v20, v26, 3, v20\nv_lshlrev_b32 v20, 7, v20")
    A("v_bfe_u32 v21, v1, 4, 1\nv_bfe_u32 v22, v1, 1, 1\nv_lshl_add_u32 v21, v21, 1, v22\nv_bfe_u32 v22, v1, 3, 1\nv_xor_b32 v22, s24, v22\nv_lshl_add_u32 v21, v22, 2, v21")
    A("v_lshl_add_u32 v20, v21, 4, v20\nv_and_b32 v22, 1, v1\nv_lshl_add_u32 v20, v22, 3, v20")
    for j in range(4):
        A(f"s_xor_b32 s47, s46, {j}\ns_lshl_b32 s47, s47, 11\ns_add_u32 s47, s47, 16384\nv_add_u32 v{36+j}, s47, v20")
    for r in list(range(10,20))+list(range(64,112))+list(range(128,144)): A(f"v_mov_b32 v{r}, 0")
    A("s_mov_b32 s25, 0\ns_mov_b32 s55, 0xffff0000\ns_mov_b32 s59, 0xfffe2000")
    XB=[112,128]; WB=[116,132]
    def reads(j,b):
        r=[f"ds_read_b128 v[{XB[b]}:{XB[b]+3}], v{5+j}"]
        for t in range(3):
            for rd in range(2): r.append(f"ds_read_b64_tr_b16 v[{WB[b]+4*t+2*rd}:{WB[b]+4*t+2*rd+1}], v{36+j} offset:{t*8192+rd*512}")
        if "nowrd" in O: r=r[:1]
        if "noxrd" in O: r=r[1:]
        return r
    def stats(j,b):
        r=[]
        if j in (0,2):
            for i in range(4):
                x=XB[b]+i; a,c=20+2*(i&1),21+2*(i&1)
                r+= [f"v_lshlrev_b32 v{a}, 16, v{x}",f"v_and_b32 v{c}, s55, v{x}",f"v_add_f32 v10, v10, v{a}",f"v_add_f32 v11, v11, v{c}",f"v_fmac_f32 v12, v{a}, v{a}",f"v_fmac_f32 v13, v{c}, v{c}"]
        else:
            lst=[(0,i) for i in range(4)]+[(2,0),(2,1)] if j==1 else [(1,i) for i in range(4)]+[(2,2),(2,3)]
            for n,(t,i) in enumerate(lst):
                x=WB[b]+4*t+i; a,c=20+2*(n&1),21+2*(n&1)
                r+= [f"v_lshlrev_b32 v{a}, 16, v{x}",f"v_and_b32 v{c}, s55, v{x}",f"v_add_f32 v{14+2*t}, v{14+2*t}, v{a}",f"v_add_f32 v{15+2*t}, v{15+2*t}, v{c}"]
        return r
    def mfmas(b,qkv):
        r=[]
        for t in range(3):
            x=f"v[{XB[b]}:{XB[b]+3}]"; w=f"v[{WB[b]+4*t}:{WB[b]+4*t+3}]"; c=f"v[{64+16*t}:{79+16*t}]"
            r.append(f"v_mfma_f32_32x32x16_bf16 {c}, {x}, {w}, {c}" if (qkv and t==2) else f"v_mfma_f32_32x32x16_bf16 {c}, {w}, {x}, {c}")
        return r
    def step(jc,b,qkv,rds):
        m=mfmas(b,qkv); s=stats(jc,b)
        if "nostat" in O: s=[]
        if "nomfma" in O: m=["","",""]
        for i in range(3):
            A(m[i])
            for x in rds[i*3:(i+1)*3 if i<2 else 99]: A(x)
            for x in s[i*8:(i+1)*8]: A(x)
    def mainloop(P,qkv):
        A(f"{P}_LOOP:")
        A(f"s_cmp_lt_u32 s25, 6\ns_cbranch_scc1 {P}_W10\ns_cmp_eq_u32 s25, 6\ns_cbranch_scc1 {P}_W5\ns_waitcnt vmcnt(0)\n{P}_W5:\ns_waitcnt vmcnt(5)\n{P}_W10:\ns_waitcnt vmcnt(10)")
        A("s_barrier")
        if STAMP: A("s_memrealtime s[80:81]")
        for x in reads(0,0): A(x)
        A(f"s_cmp_ge_u32 s25, 5\ns_cbranch_scc1 {P}_NODMA")
        for d in dma_list(): A(d)
        A(f"s_cmp_eq_u32 s26, 163840\ns_cselect_b32 s26, 0, s26\n{P}_NODMA:")
        step(3,1,qkv,[])
        A("s_waitcnt lgkmcnt(0)")
        if STAMP: A("v_cmp_eq_u32 vcc, s25, v1\nv_mov_b32 v40, s80\nv_cndmask_b32 v9, v9, v40, vcc")
        step(0,0,qkv,reads(1,1))
        A("s_waitcnt lgkmcnt(0)"); step(1,1,qkv,reads(2,0))
        A("s_waitcnt lgkmcnt(0)"); step(2,0,qkv,reads(3,1))
        A("s_add_u32 s25, s25, 1\ns_and_b32 s47, s25, 3\ns_cmp_eq_u32 s47, 0\ns_cselect_b32 s47, s59, 40960")
        for r in (5,6,7,8,36,37,38,39): A(f"v_add_u32 v{r}, s47, v{r}")
        A(f"s_cmp_lt_u32 s25, 8\ns_waitcnt lgkmcnt(0)\ns_cbranch_scc1 {P}_LOOP")
        step(3,1,qkv,[])
        st(2)
        A("v_add_f32 v10, v10, v11\nv_add_f32 v12, v12, v13\nv_add_f32 v14, v14, v15\nv_add_f32 v16, v16, v17\nv_add_f32 v18, v18, v19\nv_mov_b32 v19, v18")
        A("v_permlane32_swap_b32 v10, v12\nv_permlane32_swap_b32 v14, v16\nv_permlane32_swap_b32 v18, v19")
        A("s_lshl_b32 s47, s24, 9\ns_lshl_b32 s53, s23, 7\ns_add_u32 s47, s47, s53\nv_lshlrev_b32 v20, 2, v27\nv_lshl_add_u32 v21, v26, 10, v20\nv_add_u32 v21, s47, v21")
        A("s_mul_i32 s47, s23, 768\ns_lshl_b32 s53, s24, 7\ns_add_u32 s47, s47, s53\nv_add_u32 v20, s47, v20\nv_lshl_add_u32 v22, v26, 8, v20")
        A("v_add_f32 v10, v10, v12\nv_add_f32 v14, v14, v16\nv_add_f32 v18, v18, v19")
        A("ds_write_b32 v21, v10\nds_write_b32 v22, v14 offset:2048\nds_write_b32 v20, v18 offset:2560")
        A(f"v_lshlrev_b32 v20, 2, v0\ns_waitcnt lgkmcnt(0)\ns_barrier\ns_cmp_ge_u32 s22, 2\ns_cbranch_scc1 {P}_F2")
        A("ds_read_b32 v10, v20\nds_read_b32 v11, v20 offset:512\nds_read_b32 v12, v20 offset:1024\nds_read_b32 v13, v20 offset:1536\ns_waitcnt lgkmcnt(0)")
        A(f"v_add_f32 v10, v10, v11\nv_add_f32 v12, v12, v13\nv_mul_f32 v10, {f32(1/512)}, v10\nv_mul_f32 v11, v10, v10\nv_mov_b32 v13, {f32(1/512)}\nv_fma_f32 v12, v12, v13, -v11\nv_max_f32 v12, 0, v12")
        A(f"v_add_f32 v11, {f32(1e-5)}, v12\nv_rsq_f32 v11, v11")
        if not qkv: A(f"v_mul_f32 v13, v11, v11\nv_fmaak_f32 v13, v13, v12, {f32(1e-5)}\nv_rsq_f32 v13, v13\nv_mul_f32 v11, v11, v13")
        A(f"v_mul_f32 v10, v10, v11\nds_write_b32 v20, v10 offset:8192\nds_write_b32 v20, v11 offset:8704\ns_branch {P}_F3")
        A(f"{P}_F2:\ns_cmp_ge_u32 s22, 5\ns_cbranch_scc1 {P}_F3")
        A("ds_read_b32 v10, v20 offset:1536\nds_read_b32 v11, v20 offset:2304\nds_read_b32 v12, v20 offset:3072\nds_read_b32 v13, v20 offset:3840\ns_waitcnt lgkmcnt(0)")
        A("v_add_f32 v10, v10, v11\nv_add_f32 v12, v12, v13\nv_add_f32 v10, v10, v12\nds_write_b32 v20, v10 offset:8704")
        if not qkv: A("v_lshlrev_b32 v28, 16, v28\nds_write_b32 v20, v28 offset:9728")
        A(f"{P}_F3:")
        A("s_lshl_b32 s47, s23, 7\nv_lshlrev_b32 v20, 2, v27\nv_add_u32 v22, s47, v20\ns_lshl_b32 s53, s24, 7\nv_lshlrev_b32 v21, 4, v26\nv_add_u32 v21, s53, v21")
        A("s_waitcnt lgkmcnt(0)\ns_barrier")
        A("ds_read_b32 v10, v22 offset:8192\nds_read_b32 v11, v22 offset:8704")
    A("s_cmp_ge_u32 s21, 8\ns_cbranch_scc1 K1_H")
    st(1)
    mainloop("Q",True)
    A("v_and_b32 v23, 16, v1\nv_mul_u32_u24 v23, 0x800, v23\nv_lshl_or_b32 v23, v23, 16, v23")
    for r in range(8): A(f"v_lshl_or_b32 v{28+r}, v{177+2*r}, 16, v{176+2*r}\nv_xor_b32 v{28+r}, v23, v{28+r}")
    def rdq(base,addr,off):
        for q in range(4): A(f"ds_read_b128 v[{base+4*q}:{base+4*q+3}], v{addr} offset:{off+32*q}")
    rdq(112,21,9216); rdq(128,21,9216+256)
    A("s_lshl_b32 s47, s23, 7\nv_lshlrev_b32 v23, 4, v26\nv_add_u32 v23, s47, v23\nv_add_u32 v24, s53, v20")
    rdq(144,23,8192); rdq(160,23,8704); A("ds_read_b32 v12, v24 offset:9728")
    A(f"s_lshl_b32 s47, s20, 2\ns_add_u32 s47, s47, s23\ns_lshl_b32 s47, s47, 5\ns_add_u32 s47, s47, s56\ns_lshl_b32 s47, s47, 11\ns_add_u32 s57, s47, {PQ_OFF}\nv_lshlrev_b32 v25, 4, v1")
    A("s_mul_i32 s47, s24, 18432\ns_mul_i32 s53, s23, 2304\ns_add_u32 s47, s47, s53\nv_mul_u32_u24 v24, 72, v27\nv_lshl_add_u32 v24, v26, 3, v24\nv_add_u32 v24, s47, v24")
    A(f"s_mov_b32 s58, {f32(LOG2E)}")
    for t in range(2):
        A(f"s_waitcnt lgkmcnt({13-4*t})")
        for r in range(16):
            c=112+16*t+r; a=64+16*t+r
            A(f"v_mul_f32 v{c}, v10, v{c}\nv_fma_f32 v{a}, v{a}, v11, -v{c}")
        for r in range(8): A(f"v_cvt_pk_bf16_f32 v{40+8*t+r}, v{64+16*t+2*r}, v{65+16*t+2*r}")
        for e in range(2): A(f"v_mfma_f32_32x32x16_bf16 v[{176+32*t+16*e}:{191+32*t+16*e}], v[{28+4*e}:{31+4*e}], v[{40+8*t+4*e}:{43+8*t+4*e}], 0")
    A("s_waitcnt lgkmcnt(0)")
    for r in range(16): A(f"v_mul_f32 v{144+r}, v12, v{144+r}\nv_fma_f32 v{96+r}, v{96+r}, v{160+r}, -v{144+r}")
    for r in range(8): A(f"v_cvt_pk_bf16_f32 v{40+r}, v{96+2*r}, v{97+2*r}")
    A("s_lshl_b32 s47, s22, 11\nv_add_u32 v23, s47, v25\nds_write_b128 v23, v[40:43] offset:53248\nds_write_b128 v23, v[44:47] offset:54272")
    def softmax(t):
        P=[176+32*t,192+32*t]; m=[(10,11,12),(13,14,15)]
        def both(f):
            a=f(0).split("\n"); b=f(1).split("\n")
            for x,y in zip(a,b): A(x); A(y)
        def mx(e):
            p=P[e]; a,b,c=m[e]
            return "\n".join([f"v_max3_f32 v{a}, v{p}, v{p+1}, v{p+2}",f"v_max3_f32 v{b}, v{p+8}, v{p+9}, v{p+10}",f"v_max3_f32 v{a}, v{a}, v{p+3}, v{p+4}",f"v_max3_f32 v{b}, v{b}, v{p+11}, v{p+12}",
              f"v_max3_f32 v{a}, v{a}, v{p+5}, v{p+6}",f"v_max3_f32 v{b}, v{b}, v{p+13}, v{p+14}",f"v_max_f32 v{a}, v{a}, v{p+7}",f"v_max_f32 v{b}, v{b}, v{p+15}",
              f"v_permlane32_swap_b32 v{a}, v{b}",f"v_max_f32 v{a}, v{a}, v{b}",f"v_mul_f32 v{a}, s58, v{a}",f"v_mov_b32 v{b}, v{a}",f"v_permlane32_swap_b32 v{a}, v{b}"])
        both(mx)
        both(lambda e:"\n".join(f"v_fma_f32 v{P[e]+r}, v{P[e]+r}, s58, -v{m[e][r>>3]}" for r in range(16)))
        both(lambda e:"\n".join(f"v_exp_f32 v{P[e]+r}, v{P[e]+r}" for r in range(16)))
        def sm(e):
            p=P[e]; a,b,c=m[e]; r=[f"v_add_f32 v{a}, v{p}, v{p+1}",f"v_add_f32 v{b}, v{p+8}, v{p+9}"]
            for i in range(2,8): r+=[f"v_add_f32 v{a}, v{a}, v{p+i}",f"v_add_f32 v{b}, v{b}, v{p+8+i}"]
            r+=[f"v_permlane32_swap_b32 v{a}, v{b}",f"v_add_f32 v{a}, v{a}, v{b}",f"v_rcp_f32 v{a}, v{a}",f"v_mov_b32 v{b}, v{a}",f"v_permlane32_swap_b32 v{a}, v{b}"]
            return "\n".join(r)
        both(sm)
        both(lambda e:"\n".join(f"v_mul_f32 v{P[e]+r}, v{P[e]+r}, v{m[e][r>>3]}" for r in range(16)))
        both(lambda e:"\n".join(f"v_cvt_pk_bf16_f32 v{48+8*e+r}, v{P[e]+2*r}, v{P[e]+2*r+1}" for r in range(8)))
    softmax(1)
    for e in range(2):
        for q in range(4): A(f"ds_write_b64 v24, v[{48+8*e+2*q}:{49+8*e+2*q}] offset:{16384+e*9216+16*q}")
    A("s_waitcnt lgkmcnt(0)\ns_barrier")
    A("s_cmp_ge_u32 s22, 4\ns_cbranch_scc1 Q_NOKV1")
    A("v_bfe_u32 v20, v1, 2, 2\nv_lshl_add_u32 v20, v26, 2, v20\nv_mul_u32_u24 v20, 72, v20\nv_bfe_u32 v21, v1, 4, 1\nv_lshl_add_u32 v20, v21, 5, v20\nv_and_b32 v22, 3, v1\nv_lshl_add_u32 v20, v22, 3, v20")
    A("s_mul_i32 s47, s22, 9216\nv_add_u32 v20, s47, v20\ns_lshr_b32 s47, s22, 1\ns_lshl_b32 s47, s47, 13\nv_add_u32 v22, s47, v25\ns_and_b32 s47, s22, 1\nv_cmp_ne_u32 s[62:63], s47, v21")
    for g in range(8):
        for rd in range(2): A(f"ds_read_b64_tr_b16 v[{64+4*g+2*rd}:{65+4*g+2*rd}], v20 offset:{16384+(16*g+8*rd)*72}")
        A(f"ds_read_b128 v[{112+4*g}:{115+4*g}], v22 offset:{53248+1024*g}")
    A("Q_NOKV1:")
    softmax(0)
    for e in range(2):
        for fr in range(2): A(f"buffer_store_dwordx4 v[{48+8*e+4*fr}:{51+8*e+4*fr}], v25, s[12:15], s57 offen offset:{e*2048+fr*1024}{SC}")
    A("s_cmp_ge_u32 s22, 4\ns_cbranch_scc1 Q_END\ns_waitcnt lgkmcnt(0)\nv_mov_b32 v20, 0x3f803f80")
    for g in range(8):
        for i in range(4): A(f"v_cndmask_b32 v{112+4*g+i}, v{112+4*g+i}, v20, s[62:63]")
    for g in range(8): A(f"v_mfma_f32_32x32x16_bf16 v[208:223], v[{64+4*g}:{67+4*g}], v[{112+4*g}:{115+4*g}], {'v[208:223]' if g else '0'}")
    A(f"s_lshl_b32 s47, s21, 2\ns_add_u32 s47, s47, s22\ns_lshl_b32 s47, s47, 4\ns_add_u32 s47, s47, s20\ns_lshl_b32 s47, s47, 12\ns_add_u32 s47, s47, {KVP_OFF}")
    for q in range(4): A(f"buffer_store_dwordx4 v[{208+4*q}:{211+4*q}], v25, s[12:15], s47 offen offset:{1024*q}{SC}")
    A("Q_END:"); st(3); flush(4,20,"s22"); A("s_endpgm")
    A("K1_H:")
    st(1)
    mainloop("H",False)
    C1=-2*0.7978845608028654*LOG2E
    A(f"s_lshl_b32 s47, s20, 2\ns_add_u32 s47, s47, s23\ns_mul_i32 s47, s47, 43\ns_mul_i32 s56, s49, 6\ns_add_u32 s56, s56, s24\ns_add_u32 s47, s47, s56\ns_lshl_b32 s57, s47, 11\nv_lshlrev_b32 v25, 4, v1\nv_mov_b32 v13, {f32(C1*0.044715)}")
    rdq(112,21,9216); rdq(128,21,10240)
    for t in range(3):
        b=112+32*(t&1); nb=112+32*((t+1)&1)
        A(f"s_cmp_ge_u32 s56, {43-2*t}\ns_cbranch_scc1 H_END")
        if t<2: rdq(nb,21,9216+256*(t+1)); rdq(nb+16,21,10240+256*(t+1)); A("s_waitcnt lgkmcnt(8)")
        else: A("s_waitcnt lgkmcnt(0)")
        a=64+16*t
        for h in range(2):
            R=range(8*h,8*h+8)
            for r in R: A(f"v_fma_f32 v{b+r}, -v10, v{b+r}, v{b+16+r}")
            for r in R: A(f"v_fma_f32 v{a+r}, v{a+r}, v11, v{b+r}")
            for r in R: A(f"v_mul_f32 v{b+r}, v{a+r}, v{a+r}")
            for r in R: A(f"v_fmaak_f32 v{b+r}, v{b+r}, v13, {f32(C1)}")
            for r in R: A(f"v_mul_f32 v{b+r}, v{b+r}, v{a+r}")
            for r in R: A(f"v_exp_f32 v{b+r}, v{b+r}")
            for r in R: A(f"v_add_f32 v{b+r}, 1.0, v{b+r}")
            for r in R: A(f"v_rcp_f32 v{b+r}, v{b+r}")
            for r in R: A(f"v_mul_f32 v{a+r}, v{a+r}, v{b+r}")
            for r in range(4): A(f"v_cvt_pk_bf16_f32 v{40+8*t+4*h+r}, v{a+8*h+2*r}, v{a+8*h+2*r+1}")
            A(f"buffer_store_dwordx4 v[{40+8*t+4*h}:{43+8*t+4*h}], v25, s[12:15], s57 offen offset:{1024*h}{SC}")
        A("s_add_u32 s57, s57, 4096")
    A("H_END:"); st(3); flush(4,20,"s22")
    A("K1_END:\ns_endpgm")
    return L
```

```python
from gen1 import *
def k2(STAMP=False,D=7,POLL=4):
    L=[]; A=L.append; vm=VM(A)
    st,flush=stamp_fns(A,STAMP,1,4,26)
    A("k2_kernel:")
    A("s_cmp_ge_u32 s2, 256\ns_cbranch_scc1 K2_END")
    st(0)
    A("s_load_dwordx2 s[36:37], s[0:1], 0\ns_load_dwordx2 s[38:39], s[0:1], 24\ns_load_dwordx4 s[40:43], s[0:1], 56\ns_load_dwordx4 s[44:47], s[0:1], 72\ns_load_dwordx2 s[48:49], s[0:1], 88")
    A("v_lshrrev_b32 v2, 6, v0\nv_and_b32 v1, 63, v0\nv_readfirstlane_b32 s50, v2")
    A("s_and_b32 s51, s2, 7\ns_lshr_b32 s52, s2, 3\ns_lshl_b32 s51, s51, 2\ns_lshr_b32 s53, s52, 3\ns_add_u32 s51, s51, s53\ns_and_b32 s52, s52, 7")
    A("s_lshr_b32 s53, s50, 1\ns_and_b32 s54, s50, 1")
    A("v_lshlrev_b32 v2, 4, v1")
    A("s_mul_i32 s55, s54, 88064\nv_add_u32 v3, s55, v2\ns_sub_u32 s55, 88064, s55\nv_add_u32 v4, s55, v2\ns_lshl_b32 s55, s54, 16\nv_add_u32 v5, s55, v2\ns_sub_u32 s55, 0x10000, s55\nv_add_u32 v6, s55, v2")
    A("s_mul_i32 s56, s51, 176128\ns_mul_i32 s55, s50, 22528\ns_add_u32 s56, s56, s55")
    A(f"s_lshl_b32 s57, s51, 17\ns_lshl_b32 s55, s50, 14\ns_add_u32 s57, s57, s55\ns_add_u32 s57, s57, {PQ_OFF}")
    A("v_lshrrev_b32 v8, 3, v1\nv_bfe_u32 v9, v1, 4, 1\nv_lshlrev_b32 v9, 2, v9\nv_and_b32 v10, 7, v1\nv_xor_b32 v9, v9, v10\nv_lshlrev_b32 v9, 4, v9\nv_lshl_add_u32 v7, v8, 10, v9\ns_lshl_b32 s55, s52, 7\nv_add_u32 v7, s55, v7")
    A(f"s_mul_i32 s58, s50, {11*32768}\ns_lshl_b32 s59, s50, 17\ns_mul_i32 s61, s50, {D*4096}")
    A("s_waitcnt lgkmcnt(0)")
    srd(A,4,40,1376*1024); srd(A,8,38,512*1024); srd(A,12,48,WS_SIZE); srd(A,16,48,64*43*2048); srd(A,20,36,2048*1024); srd(A,24,44,2048*1024); srd(A,28,42,1024)
    A("s_cmp_lt_u32 s2, 64\ns_cselect_b32 s62, s50, 0\ns_cmp_eq_u32 s62, 3\ns_cselect_b32 s62, 1, 0")
    def unit_ops(u):
        r=[]; sl=u%D; B=16*sl
        if u<11:
            for i in range(2):
                for fr in range(2): r.append((f"buffer_load_dwordx4 a[{B+8*i+4*fr}:{B+8*i+4*fr+3}], v{3+i}, s[16:19], s56 offen offset:{1024*fr}",u))
            r[-1]=(r[-1][0]+"\ns_add_u32 s56, s56, 2048",u)
            for p in range(4): r.append((f"s_add_u32 m0, s61, {sl*4096+p*1024}\ns_nop 0\nbuffer_load_dwordx4 v7, s[4:7], s58 offen lds\ns_add_u32 s58, s58, 8192",u))
        elif u<19:
            for i in range(2):
                for fr in range(2): r.append((f"buffer_load_dwordx4 a[{B+8*i+4*fr}:{B+8*i+4*fr+3}], v{5+i}, s[12:15], s57 offen offset:{1024*fr}",u))
            r[-1]=(r[-1][0]+"\ns_add_u32 s57, s57, 2048",u)
            for p in range(2): r.append((f"s_add_u32 m0, s61, {sl*4096+p*1024}\ns_nop 0\nbuffer_load_dwordx4 v7, s[8:11], s59 offen lds\ns_add_u32 s59, s59, 8192",u))
        return r
    A("s_cmp_eq_u32 s62, 0\ns_cbranch_scc1 K2_NR1")
    A(f"s_lshr_b32 s55, s2, 1\ns_lshl_b32 s55, s55, 16\ns_and_b32 s63, s2, 1\ns_lshl_b32 s63, s63, 11\ns_add_u32 s55, s55, s63\ns_add_u32 s55, s55, {KVP_OFF}")
    for rb in range(16):
        for q in range(2): vm.issue(f"buffer_load_dwordx4 v[{64+8*rb+4*q}:{67+8*rb+4*q}], v2, s[12:15], s55 offen offset:{1024*q}","red",True)
        A("s_add_u32 s55, s55, 4096")
    A("K2_NR1:")
    for u in range(3):
        for l,t in unit_ops(u): vm.issue(l,t)
    A("s_cmp_eq_u32 s62, 0\ns_cbranch_scc1 K2_NR2")
    vm.wait("red")
    n=16
    while n>1:
        n//=2
        for k in range(n):
            for r in range(8): A(f"v_add_f32 v{64+8*k+r}, v{64+8*k+r}, v{64+8*(k+n)+r}")
    for r in range(4): A(f"v_cvt_pk_bf16_f32 v{72+r}, v{64+2*r}, v{65+2*r}")
    A(f"s_lshl_b32 s55, s2, 10\ns_add_u32 s55, s55, {KVF_OFF}")
    vm.issue("buffer_store_dwordx4 v[72:75], v2, s[12:15], s55 offen sc1","rs",True)
    A("K2_NR2:")
    for u in range(3,D-1):
        for l,t in unit_ops(u): vm.issue(l,t)
    A("v_lshrrev_b32 v12, 5, v1\nv_bfe_u32 v8, v1, 2, 2\nv_lshl_add_u32 v8, v12, 2, v8\nv_lshlrev_b32 v8, 7, v8\nv_and_b32 v9, 1, v1\nv_lshl_add_u32 v8, v9, 3, v8\nv_add_u32 v8, s61, v8")
    A("v_bfe_u32 v9, v1, 4, 1\nv_bfe_u32 v10, v1, 1, 1\nv_lshl_add_u32 v9, v9, 1, v10\nv_bfe_u32 v10, v1, 3, 1\nv_xor_b32 v10, s53, v10\nv_lshl_add_u32 v9, v10, 2, v9\nv_lshlrev_b32 v10, 4, v9\nv_xor_b32 v9, 64, v10\nv_add_u32 v9, v9, v8\nv_add_u32 v8, v10, v8")
    A("s_lshl_b32 s55, s51, 1\ns_add_u32 s55, s55, s54\ns_lshl_b32 s55, s55, 15\nv_and_b32 v11, 31, v1\nv_lshlrev_b32 v11, 10, v11\nv_add_u32 v11, s55, v11\ns_lshl_b32 s55, s52, 7\ns_lshl_b32 s63, s53, 6\ns_add_u32 s55, s55, s63\nv_lshlrev_b32 v13, 3, v12\nv_add_u32 v13, s55, v13\nv_add_u32 v11, v11, v13")
    AF=[192,208]
    def trs(u):
        r=[]; sl=u%D; F=AF[u&1]
        for j in range(2 if u<11 else 1):
            for a in range(2):
                for rd in range(2): r.append(f"ds_read_b64_tr_b16 v[{F+8*j+4*a+2*rd}:{F+8*j+4*a+2*rd+1}], v{8+a} offset:{sl*4096+j*2048+rd*1024}")
        return r
    def acc(a,i): return f"a[{128+32*a+16*i}:{143+32*a+16*i}]"
    def nm(u):
        B=16*(u%D); hd=u-11; N=128+32*(u&1); r=[]
        for fr in range(2):
            for i in range(2): r.append(f"v_mfma_f32_32x32x16_bf16 v[{N+16*i}:{N+16*i+15}], v[{64+8*hd+4*fr}:{67+8*hd+4*fr}], a[{B+8*i+4*fr}:{B+8*i+4*fr+3}], {'0' if fr==0 else f'v[{N+16*i}:{N+16*i+15}]'}")
        return r
    vm.wait(0)
    for x in trs(0): A(x)
    st(1)
    A(f"s_mov_b32 s63, {f32(1e-6)}")
    for u in range(19):
        nxt=unit_ops(u+D-1)
        def kvl(sc):
            kv=[]
            for hd in range(8):
                for fr in range(2): kv.append((f"buffer_load_dwordx4 v[{64+8*hd+4*fr}:{67+8*hd+4*fr}], v{22+(hd>>1)}, s[12:15], s3 offen offset:{(hd&1)*2048+fr*1024}{sc}","kv"))
            return kv
        if u==POLL:
            A(f"s_lshl_b32 s3, s50, 14\ns_add_u32 s3, s3, {KVF_OFF}\nv_mov_b32 v22, v2\nv_add_u32 v23, 4096, v2\nv_add_u32 v24, 8192, v2\nv_add_u32 v25, 12288, v2")
            nxt=nxt+kvl("")
        if u==12:
            nxt=nxt+[(f"buffer_load_dwordx2 v[{232+2*q}:{233+2*q}], v11, s[20:23], 0 offen offset:{16*q}","x") for q in range(4)]+[(f"buffer_load_dwordx2 v[{240+2*q}:{241+2*q}], v13, s[28:31], 0 offen offset:{16*q}","x") for q in range(4)]
        if u+1<19:
            vm.wait(u+1)
            if u+1==11:
                vm.wait("kv")
                A("s_mov_b32 s55, 0\nK2_CHK:\nv_max3_u32 v14, v64, v65, v66\nv_max3_u32 v15, v67, v68, v69")
                for r in range(70,126,4): A(f"v_max3_u32 v14, v14, v{r}, v{r+1}\nv_max3_u32 v15, v15, v{r+2}, v{r+3}")
                A("v_max3_u32 v14, v14, v126, v127\nv_max_u32 v14, v14, v15\nv_cmp_eq_u32 vcc, -1, v14\ns_cbranch_vccz K2_GO\ns_add_u32 s55, s55, 1\ns_cmp_gt_u32 s55, 0x10000\ns_cbranch_scc1 K2_GO\ns_sleep 8")
                for l,t in kvl(" sc1"): A(l)
                A("s_waitcnt vmcnt(0)\ns_branch K2_CHK\nK2_GO:")
        nr=trs(u+1) if u+1<19 else []
        if STAMP and u%2==0: A("s_memrealtime s[80:81]")
        A(f"s_waitcnt lgkmcnt(0)")
        if STAMP and u%2==0: A(f"v_writelane_b32 v26, s80, {u//2}")
        for x in nr: A(x)
        F=AF[u&1]; B=16*(u%D); ms=[]
        if u<11:
            for j in range(2):
                for a in range(2):
                    for i in range(2): ms.append(f"v_mfma_f32_32x32x16_bf16 {acc(a,i)}, v[{F+8*j+4*a}:{F+8*j+4*a+3}], a[{B+8*i+4*j}:{B+8*i+4*j+3}], {acc(a,i) if (u or j) else '0'}")
            if u==10: ms+=nm(11)
        else:
            if u+1<19: ms+=nm(u+1)
            N=128+32*(u&1); odd=(u-11)&1; v=[]
            for i in range(2):
                nb_=N+16*i+(8 if odd else 0); dn=N+16*i+(0 if odd else 8)
                v.append(f"v_add_f32 v{14+i}, s63, v{dn}")
            for i in range(2): v.append(f"v_rcp_f32 v{14+i}, v{14+i}")
            for i in range(2):
                nb_=N+16*i+(8 if odd else 0)
                for r in range(8): v.append(f"v_mul_f32 v{nb_+r}, v{nb_+r}, v{14+i}")
                for r in range(4): v.append(f"v_cvt_pk_bf16_f32 v{224+4*i+r}, v{nb_+2*r}, v{nb_+2*r+1}")
            if ms:
                k=len(v)//4
                for i in range(4): ms[i]+="\n"+"\n".join(v[i*k:(i+1)*k if i<3 else 99])
            else: ms.append("\n".join(v))
            for i in range(2):
                for a in range(2): ms.append(f"v_mfma_f32_32x32x16_bf16 {acc(a,i)}, v[{F+4*a}:{F+4*a+3}], v[{224+4*i}:{227+4*i}], {acc(a,i)}")
        per=-(-len(nxt)//len(ms))
        for k,m in enumerate(ms):
            A(m)
            for l,t in nxt[k*per:(k+1)*per]: vm.issue(l,t)
    st(2)
    A("v_add_u32 v14, s61, v2")
    for i in range(1,4):
        b=128+32*(i>>1)+16*(i&1)
        for q in range(4): A(f"ds_write_b128 v14, a[{b+4*q}:{b+4*q+3}] offset:{(i-1)*4096+q*1024}")
    for i in range(1,4): A(f"s_xor_b32 s55, s50, {i}\ns_mul_i32 s55, s55, {D*4096}\nv_add_u32 v{14+i}, s55, v2")
    for r in range(16): A(f"v_accvgpr_read_b32 v{64+r}, a{128+r}")
    vm.wait("x")
    for q in range(4):
        for k,(src) in enumerate((232+2*q,233+2*q)):
            A(f"v_lshlrev_b32 v18, 16, v{src}\nv_and_b32 v19, 0xffff0000, v{src}\nv_lshlrev_b32 v20, 16, v{src+8}\nv_and_b32 v21, 0xffff0000, v{src+8}\nv_add_f32 v18, v18, v20\nv_add_f32 v19, v19, v21\nv_add_f32 v{64+4*q+2*k}, v{64+4*q+2*k}, v18\nv_add_f32 v{65+4*q+2*k}, v{65+4*q+2*k}, v19")
    A("s_waitcnt lgkmcnt(0)\ns_barrier")
    for i in range(1,4):
        for q in range(4): A(f"ds_read_b128 v[{128+16*(i-1)+4*q}:{131+16*(i-1)+4*q}], v{14+i} offset:{(i-1)*4096+q*1024}")
    A("v_lshl_add_u32 v11, v12, 3, v11")
    for i in range(3):
        A(f"s_waitcnt lgkmcnt({8-4*i})")
        for r in range(16): A(f"v_add_f32 v{64+r}, v{64+r}, v{128+16*i+r}")
    for r in range(8): A(f"v_cvt_pk_bf16_f32 v{80+r}, v{64+2*r}, v{65+2*r}")
    for p in range(2):
        A(f"v_permlane32_swap_b32 v{80+4*p}, v{82+4*p}\nv_permlane32_swap_b32 v{81+4*p}, v{83+4*p}")
    for p in range(2): A(f"buffer_store_dwordx4 v[{80+4*p}:{83+4*p}], v11, s[24:27], 0 offen offset:{32*p}")
    st(3); flush(4,20,"s50")
    A("K2_END:\ns_endpgm")
    return L
```

```python
import sys
from gen2 import *
o=dict(a.split("=") if "=" in a else (a,"1") for a in sys.argv[1:])
ST="stamp" in o; D=int(o.get("D",7))
hdr=open("parallel_sum__linear_kernel_hedgehog__mixer_channel_mlp__prompt.s.ref").read().split("; Override")[0]
out=[hdr.rstrip(),"; Generated by hand-written generator scripts (two kernels: k1 = LN+QKV/MLP-up GEMM+features+kv partials, k2 = kv reduce + attention + down GEMM)",
 "; @launch kernel=k1_kernel grid=(256,1,1) block=(512,1,1) lds=163840",
 f"; @launch kernel=k2_kernel grid=(256,1,1) block=(256,1,1) lds={D*16384}",
 *(["; @launch kernel=k3_kernel grid=(1,1,1) block=(64,1,1) lds=0"] if "k3" in o else []),
 '.amdgcn_target "amdgcn-amd-amdhsa--gfx950"','.text']
for n,f in (("k1_kernel",k1(ST,o)),("k2_kernel",k2(ST,D,int(o.get("POLL",4)),int(o.get("RU",6)),int(o.get("BB",0))))):
    out+=[f".globl {n}",".p2align 8",f".type {n},@function"]+pad(f)
if "k3" in o: out+=[".globl k3_kernel",".p2align 8",".type k3_kernel,@function","k3_kernel:","s_endpgm"]
out+=['.section .rodata,"a"','.p2align 6',kdesc("k1_kernel",240,240),'.p2align 6',kdesc("k2_kernel",448,256)]
if "k3" in o: out+=['.p2align 6',kdesc("k3_kernel",8,8)]
print("\n".join(out))
```

```python
from asmlib import *
H_OFF=0; PQ_OFF=0x600000; KVP_OFF=0xA00000; KVF_OFF=0xC00000; ST_OFF=0x2000000
WS_SIZE=0x3000000
LOG2E=1.4426950408889634
import struct
def f32(x): return "0x%08x"%struct.unpack("<I",struct.pack("<f",x))[0]
def stamp_fns(A,on,kidx,nw,lv=9):
    def st(i):
        if on: A(f"s_memrealtime s[{64+2*i}:{65+2*i}]")
        if on and i in (0,3): A(f"s_memtime s[{82+i+i%2}:{83+i+i%2}]")
    def flush(n,tmp,wreg):
        if not on: return
        A("s_waitcnt lgkmcnt(0)")
        A(f"s_lshl_b32 s60, s2, 3\ns_add_u32 s60, s60, {wreg}\ns_lshl_b32 s60, s60, 6\ns_add_u32 s60, s60, {ST_OFF+kidx*0x40000}")
        A(f"v_mov_b32 v{tmp+1}, 0\ns_sub_u32 s82, s86, s82\nv_writelane_b32 v{lv}, s82, 11")
        for i in range(n): A(f"v_mov_b32 v{tmp}, s{64+2*i}\nbuffer_store_dword v{tmp}, v{tmp+1}, s[12:15], s60 offen offset:{4*i}")
        A(f"s_mov_b64 exec, 0xfff\nv_lshlrev_b32 v{tmp}, 2, v1\nbuffer_store_dword v{lv}, v{tmp}, s[12:15], s60 offen offset:16")
    return st,flush
def srd(A,r,ptr,size): A(f"s_mov_b32 s{r}, s{ptr}\ns_mov_b32 s{r+1}, s{ptr+1}\ns_mov_b32 s{r+2}, {size}\ns_mov_b32 s{r+3}, 0x20000")
def pk(op,d,*src,bc={},neg=()):
    n=len(src); f=lambda x: x if isinstance(x,str) else f"v[{x&~1}:{(x&~1)+1}]"
    lo=[bc.get(i,0) for i in range(n)]; hi=[bc.get(i,1) for i in range(n)]; ng=[1 if i in neg else 0 for i in range(n)]
    t=f"v_pk_{op}_f32 v[{d}:{d+1}], "+", ".join(f(x) for x in src)
    j=lambda v:"["+",".join(map(str,v))+"]"
    if any(lo): t+=" op_sel:"+j(lo)
    if not all(hi): t+=" op_sel_hi:"+j(hi)
    if any(ng): t+=f" neg_lo:{j(ng)} neg_hi:{j(ng)}"
    return t
def k1(STAMP=False,O={}):
    L=[]; A=L.append; SC=" "+O.get("SC","").replace("_"," ")
    st,flush=stamp_fns(A,STAMP,0,8)
    def wl(i):
        if STAMP: A(f"s_memrealtime s[80:81]\ns_waitcnt lgkmcnt(0)\nv_writelane_b32 v9, s80, {i}")
    A("k1_kernel:")
    A("s_cmp_ge_u32 s2, 256\ns_cbranch_scc1 K1_END")
    st(0)
    A("s_load_dwordx4 s[32:35], s[0:1], 0\ns_load_dwordx2 s[36:37], s[0:1], 16\ns_load_dwordx4 s[40:43], s[0:1], 40\ns_load_dwordx2 s[44:45], s[0:1], 88\ns_load_dwordx2 s[88:89], s[0:1], 24\ns_load_dwordx2 s[90:91], s[0:1], 56")
    A("v_lshrrev_b32 v20, 6, v0\nv_and_b32 v1, 63, v0\nv_readfirstlane_b32 s22, v20")
    A("s_and_b32 s31, s2, 7\ns_lshr_b32 s38, s2, 3\ns_and_b32 s20, s31, 1\ns_lshl_b32 s20, s20, 3\ns_lshr_b32 s39, s38, 2\ns_add_u32 s20, s20, s39")
    A("s_lshr_b32 s21, s31, 1\ns_and_b32 s39, s38, 3\ns_lshl_b32 s39, s39, 2\ns_add_u32 s21, s21, s39")
    A("s_and_b32 s23, s22, 3\ns_lshr_b32 s24, s22, 2\ns_xor_b32 s46, s23, s24")
    A("v_lshrrev_b32 v20, 3, v1\nv_lshrrev_b32 v21, 4, v1\nv_and_b32 v22, 7, v1")
    A("s_lshl_b32 s39, s20, 7\ns_lshl_b32 s47, s22, 4\ns_add_u32 s39, s39, s47\nv_add_u32 v23, s39, v20\nv_lshlrev_b32 v23, 10, v23")
    A("v_xor_b32 v24, v22, v21\nv_lshl_add_u32 v2, v24, 4, v23\nv_xor_b32 v24, 4, v24\nv_lshl_add_u32 v3, v24, 4, v23\nv_add_u32 v3, 0x2000, v3")
    A("v_and_b32 v24, 1, v21\nv_lshlrev_b32 v24, 2, v24\nv_xor_b32 v24, v22, v24\nv_lshlrev_b32 v24, 4, v24\ns_lshl_b32 s47, s22, 3\nv_add_u32 v25, s47, v20")
    A("v_lshrrev_b32 v26, 5, v1\nv_and_b32 v27, 31, v1\ns_waitcnt lgkmcnt(0)")
    srd(A,4,32,2048*1024); srd(A,12,44,WS_SIZE)
    A(f"s_cmp_ge_u32 s2, 8\ns_cbranch_scc1 K1_NOS\ns_lshl_b32 s47, s2, 13\ns_add_u32 s47, s47, {KVF_OFF}\nv_lshlrev_b32 v28, 4, v0\nv_mov_b32 v64, -1\nv_mov_b32 v65, -1\nv_mov_b32 v66, -1\nv_mov_b32 v67, -1\nbuffer_store_dwordx4 v[64:67], v28, s[12:15], s47 offen\nK1_NOS:")
    A("s_cmp_ge_u32 s21, 8\ns_cbranch_scc1 K1_HSET")
    srd(A,8,34,512*3072); srd(A,16,36,32*512)
    A("s_lshl_b32 s47, s21, 2\ns_lshl_b32 s53, s24, 1\ns_add_u32 s56, s47, s53\ns_lshl_b32 s47, s56, 9\nv_and_b32 v20, 15, v1\nv_lshlrev_b32 v20, 1, v20\nv_lshl_add_u32 v20, v26, 7, v20")
    for e in range(2):
        for i in range(8):
            d=(i&3)+8*(i>>2)
            A(f"buffer_load_ushort v{176+8*e+i}, v20, s[16:19], s47 offen offset:{e*512+d*32}")
    A("s_movk_i32 s48, 3072\ns_movk_i32 s29, 1024\ns_lshl_b32 s28, s21, 7\ns_branch K1_SET")
    A("K1_HSET:")
    srd(A,8,40,512*2752); srd(A,16,42,2752)
    A("s_movk_i32 s48, 2752\ns_movk_i32 s29, 128\ns_sub_u32 s49, s21, 8\ns_mul_i32 s28, s49, 384")
    A("v_subrev_u32 v20, 128, v0\nv_lshlrev_b32 v20, 1, v20\ns_mul_i32 s47, s49, 384\nv_add_u32 v20, s47, v20\nbuffer_load_ushort v28, v20, s[16:19], 0 offen")
    A("K1_SET:")
    A("v_mul_lo_u32 v4, s48, v25\nv_add_u32 v4, v4, v24\ns_lshl_b32 s30, s48, 6\ns_mov_b32 s27, 0")
    A("s_lshl_b32 s50, s22, 11\ns_lshl_b32 s51, s22, 10\ns_add_u32 s51, s51, 16384\ns_mov_b32 s26, 0")
    def dma_list():
        r=[]
        r.append("s_add_u32 m0, s26, s50\ns_add_u32 s53, s28, s29\nbuffer_load_dwordx4 v2, s[4:7], s27 offen lds")
        r.append("s_add_u32 m0, m0, 1024\ns_add_u32 s54, s53, s29\nbuffer_load_dwordx4 v3, s[4:7], s27 offen lds")
        r.append("s_add_u32 m0, s26, s51\ns_add_u32 s27, s27, 128\nbuffer_load_dwordx4 v4, s[8:11], s28 offen lds")
        r.append("s_add_u32 m0, m0, 8192\ns_add_u32 s28, s28, s30\nbuffer_load_dwordx4 v4, s[8:11], s53 offen lds")
        r.append("s_add_u32 m0, m0, 8192\ns_add_u32 s26, s26, 40960\nbuffer_load_dwordx4 v4, s[8:11], s54 offen lds")
        return r
    for s in range(3):
        for d in dma_list(): A(d)
    A("s_lshl_b32 s47, s23, 5\nv_add_u32 v20, s47, v27")
    A("v_bfe_u32 v21, v20, 1, 3\nv_xor_b32 v21, v21, v26\nv_lshlrev_b32 v20, 7, v20")
    for j in range(4):
        A(f"s_xor_b32 s47, s46, {j}\ns_lshl_b32 s47, s47, 1\nv_xor_b32 v22, s47, v21\nv_lshl_add_u32 v{5+j}, v22, 4, v20")
    A("v_bfe_u32 v20, v1, 2, 2\nv_lshl_add_u32 v20, v26, 3, v20\nv_lshlrev_b32 v20, 7, v20")
    A("v_bfe_u32 v21, v1, 4, 1\nv_bfe_u32 v22, v1, 1, 1\nv_lshl_add_u32 v21, v21, 1, v22\nv_bfe_u32 v22, v1, 3, 1\nv_xor_b32 v22, s24, v22\nv_lshl_add_u32 v21, v22, 2, v21")
    A("v_lshl_add_u32 v20, v21, 4, v20\nv_and_b32 v22, 1, v1\nv_lshl_add_u32 v20, v22, 3, v20")
    for j in range(4):
        A(f"s_xor_b32 s47, s46, {j}\ns_lshl_b32 s47, s47, 11\ns_add_u32 s47, s47, 16384\nv_add_u32 v{36+j}, s47, v20")
    for r in [12,13]+list(range(64,112))+list(range(128,160)): A(f"v_mov_b32 v{r}, 0")
    A("s_mov_b32 s25, 0\ns_mov_b32 s55, 0xffff0000\ns_mov_b32 s59, 0xfffe2000\ns_mov_b32 s52, 0x400000\ns_mov_b32 s61, 1376*1024")
    A("v_bfe_u32 v20, v1, 2, 2\nv_bfe_u32 v21, v1, 4, 1\nv_cmp_eq_u32 vcc, v20, v21\nv_mov_b32 v20, 0x3f803f80\nv_cndmask_b32 v160, 0, v20, vcc\nv_mov_b32 v161, v160\nv_mov_b32 v162, v160\nv_mov_b32 v163, v160")
    XB=[112,128]; WB=[116,132]
    def reads(j,b):
        r=[f"ds_read_b128 v[{XB[b]}:{XB[b]+3}], v{5+j}"]
        for t in range(3):
            for rd in range(2): r.append(f"ds_read_b64_tr_b16 v[{WB[b]+4*t+2*rd}:{WB[b]+4*t+2*rd+1}], v{36+j} offset:{t*8192+rd*512}")
        if "nowrd" in O: r=r[:1]
        if "noxrd" in O: r=r[1:]
        return r
    def m16(d,x): return f"v_mfma_f32_16x16x32_bf16 v[{d}:{d+3}], v[160:163], v[{x}:{x+3}], v[{d}:{d+3}]"
    def stats(j,b):
        r=[]
        if j in (0,2):
            if "sqm" in O: return [m16(144,XB[b]),f"v_mfma_f32_32x32x16_bf16 v[224:239], v[{XB[b]}:{XB[b]+3}], v[{XB[b]}:{XB[b]+3}], v[224:239]"]
            for i in range(4):
                x=XB[b]+i; a=20+2*(i&1)
                r+= [f"v_lshlrev_b32 v{a}, 16, v{x}",f"v_and_b32 v{a+1}, s55, v{x}",f"v_fmac_f32 v12, v{a}, v{a}",f"v_fmac_f32 v13, v{a+1}, v{a+1}"]
            r.append(m16(144,XB[b]))
        else: r=[m16(148+4*t,WB[b]+4*t) for t in ((0,1) if j==1 else (2,))]
        return r
    def mfmas(b,qkv):
        r=[]
        for t in range(3):
            x=f"v[{XB[b]}:{XB[b]+3}]"; w=f"v[{WB[b]+4*t}:{WB[b]+4*t+3}]"; c=f"v[{64+16*t}:{79+16*t}]"
            r.append(f"v_mfma_f32_32x32x16_bf16 {c}, {x}, {w}, {c}" if (qkv and t==2) else f"v_mfma_f32_32x32x16_bf16 {c}, {w}, {x}, {c}")
        return r
    def step(jc,b,qkv,rds,dm=[],ex=[]):
        m=mfmas(b,qkv); s=stats(jc,b)
        if "nostat" in O: s=[]
        if "nomfma" in O: m=["","",""]
        if "nov" in O: s=[x for x in s if "mfma" in x]
        if "no16" in O: s=[x for x in s if "mfma" not in x]
        if "e16" in O:
            q=[x for x in s if "mfma" in x]; s=[x for x in s if "mfma" not in x]
            m[2]="\n".join([m[2]]+q)
        h=len(s)//2
        A(m[0])
        for x in rds: A(x)
        A(m[1])
        for x in dm[:1]+s[:h]+ex[:4]: A(x)
        A(m[2])
        for x in dm[1:]+s[h:]+ex[4:]: A(x)
    def mainloop(P,qkv):
        A(f"{P}_LOOP:")
        A("s_waitcnt vmcnt(10)\ns_barrier")
        if STAMP: A("s_memtime s[80:81]" if "cyc" in O else "s_memrealtime s[80:81]")
        d=dma_list()
        A("s_cmp_eq_u32 s25, 5\ns_cselect_b32 s27, s52, s27")
        step(3,1,qkv,reads(0,0),d[0:1])
        A("s_waitcnt lgkmcnt(0)")
        if STAMP: A("v_cmp_eq_u32 vcc, s25, v1\nv_mov_b32 v40, s80\nv_cndmask_b32 v9, v9, v40, vcc")
        step(0,0,qkv,reads(1,1),d[1:3])
        A("s_waitcnt lgkmcnt(0)"); step(1,1,qkv,reads(2,0),d[3:4])
        A("s_add_u32 s25, s25, 1\ns_and_b32 s47, s25, 3\ns_cmp_eq_u32 s47, 0\ns_cselect_b32 s47, s59, 40960")
        A("s_waitcnt lgkmcnt(0)"); step(2,0,qkv,reads(3,1),d[4:5],[f"v_add_u32 v{r}, s47, v{r}" for r in (5,6,7,8,36,37,38,39)])
        A(f"s_cmp_eq_u32 s26, 163840\ns_cselect_b32 s26, 0, s26\ns_cmp_lt_u32 s25, 8\ns_waitcnt lgkmcnt(0)\ns_cbranch_scc1 {P}_LOOP")
        A("s_waitcnt vmcnt(0)\ns_barrier")
        if "pf" in O and not qkv:
            A("s_mov_b32 s95, 0x20000\ns_lshr_b32 s47, s2, 5\ns_lshl_b32 s47, s47, 1\ns_bfe_u32 s53, s2, 0x10003\ns_add_u32 s47, s47, s53\ns_lshl_b32 s47, s47, 3\ns_add_u32 s47, s47, s22\ns_cmp_lt_u32 s47, 86\ns_cselect_b32 s92, s90, s88\ns_cselect_b32 s93, s91, s89\ns_cselect_b32 s94, s61, 0x80000\ns_cselect_b32 s53, 0, 86\ns_sub_u32 s47, s47, s53\ns_lshl_b32 s47, s47, 14\nv_lshlrev_b32 v2, 7, v1\nv_add_u32 v3, 0x2000, v2\nbuffer_load_dword v2, v2, s[92:95], s47 offen\nbuffer_load_dword v3, v3, s[92:95], s47 offen")
        step(3,1,qkv,[])
        st(2)
        A("v_mov_b32 v10, v144\nv_add_f32 v12, v12, v13\nv_mov_b32 v14, v148\nv_mov_b32 v16, v152\nv_mov_b32 v18, v156\nv_mov_b32 v19, v156")
        A("v_permlane32_swap_b32 v10, v12\nv_permlane32_swap_b32 v14, v16\nv_permlane32_swap_b32 v18, v19")
        A("s_lshl_b32 s47, s24, 9\ns_lshl_b32 s53, s23, 7\ns_add_u32 s47, s47, s53\nv_lshlrev_b32 v20, 2, v27\nv_lshl_add_u32 v21, v26, 10, v20\nv_add_u32 v21, s47, v21")
        A("s_mul_i32 s47, s23, 768\ns_lshl_b32 s53, s24, 7\ns_add_u32 s47, s47, s53\nv_add_u32 v20, s47, v20\nv_lshl_add_u32 v22, v26, 8, v20")
        A("v_add_f32 v10, v10, v12\nv_add_f32 v14, v14, v16\nv_add_f32 v18, v18, v19")
        A("ds_write_b32 v21, v10\nds_write_b32 v22, v14 offset:2048\nds_write_b32 v20, v18 offset:2560")
        A(f"v_lshlrev_b32 v20, 2, v0\ns_waitcnt lgkmcnt(0)\ns_barrier\ns_cmp_ge_u32 s22, 2\ns_cbranch_scc1 {P}_F2")
        A("ds_read_b32 v10, v20\nds_read_b32 v11, v20 offset:512\nds_read_b32 v12, v20 offset:1024\nds_read_b32 v13, v20 offset:1536\ns_waitcnt lgkmcnt(0)")
        A(f"v_add_f32 v10, v10, v11\nv_add_f32 v12, v12, v13\nv_mul_f32 v10, {f32(1/512)}, v10\nv_mul_f32 v11, v10, v10\nv_mov_b32 v13, {f32(1/512)}\nv_fma_f32 v12, v12, v13, -v11\nv_max_f32 v12, 0, v12")
        A(f"v_add_f32 v11, {f32(1e-5)}, v12\nv_rsq_f32 v11, v11")
        if not qkv: A(f"v_mul_f32 v13, v11, v11\nv_fmaak_f32 v13, v13, v12, {f32(1e-5)}\nv_rsq_f32 v13, v13\nv_mul_f32 v11, v11, v13")
        A(f"v_mul_f32 v10, v10, v11\nds_write_b32 v20, v10 offset:8192\nds_write_b32 v20, v11 offset:8704\ns_branch {P}_F3")
        A(f"{P}_F2:\ns_cmp_ge_u32 s22, 5\ns_cbranch_scc1 {P}_F3")
        A("ds_read_b32 v10, v20 offset:1536\nds_read_b32 v11, v20 offset:2304\nds_read_b32 v12, v20 offset:3072\nds_read_b32 v13, v20 offset:3840\ns_waitcnt lgkmcnt(0)")
        A("v_add_f32 v10, v10, v11\nv_add_f32 v12, v12, v13\nv_add_f32 v10, v10, v12\nds_write_b32 v20, v10 offset:8704")
        if not qkv: A("v_lshlrev_b32 v28, 16, v28\nds_write_b32 v20, v28 offset:9728")
        A(f"{P}_F3:")
        A("s_lshl_b32 s47, s23, 7\nv_lshlrev_b32 v20, 2, v27\nv_add_u32 v22, s47, v20\ns_lshl_b32 s53, s24, 7\nv_lshlrev_b32 v21, 4, v26\nv_add_u32 v21, s53, v21")
        A("s_waitcnt lgkmcnt(0)\ns_barrier")
        A("ds_read_b32 v10, v22 offset:8192\nds_read_b32 v11, v22 offset:8704")
    if "prio" in O: A("s_cmp_lt_u32 s22, 4\ns_cbranch_scc1 K1_NP\ns_setprio 1\nK1_NP:")
    A("s_cmp_ge_u32 s21, 8\ns_cbranch_scc1 K1_H")
    st(1)
    mainloop("Q",True)
    A("v_and_b32 v23, 16, v1\nv_mul_u32_u24 v23, 0x800, v23\nv_lshl_or_b32 v23, v23, 16, v23")
    for r in range(8): A(f"v_lshl_or_b32 v{28+r}, v{177+2*r}, 16, v{176+2*r}\nv_xor_b32 v{28+r}, v23, v{28+r}")
    def rdq(base,addr,off):
        for q in range(4): A(f"ds_read_b128 v[{base+4*q}:{base+4*q+3}], v{addr} offset:{off+32*q}")
    wl(8)
    rdq(112,21,9216); rdq(128,21,9216+256)
    A("s_lshl_b32 s47, s23, 7\nv_lshlrev_b32 v23, 4, v26\nv_add_u32 v23, s47, v23\nv_add_u32 v24, s53, v20")
    rdq(144,23,8192); rdq(160,23,8704); A("ds_read_b32 v12, v24 offset:9728")
    A(f"s_lshl_b32 s47, s20, 2\ns_add_u32 s47, s47, s23\ns_lshl_b32 s47, s47, 5\ns_add_u32 s47, s47, s56\ns_lshl_b32 s47, s47, 11\ns_add_u32 s57, s47, {PQ_OFF}\nv_lshlrev_b32 v25, 4, v1")
    A("s_mul_i32 s47, s24, 18432\ns_mul_i32 s53, s23, 2304\ns_add_u32 s47, s47, s53\nv_mul_u32_u24 v24, 72, v27\nv_lshl_add_u32 v24, v26, 3, v24\nv_add_u32 v24, s47, v24")
    A(f"s_mov_b32 s58, {f32(LOG2E)}")
    for t in range(2):
        A(f"s_waitcnt lgkmcnt({13-4*t})")
        for r in range(0,16,2): A(pk("mul",112+16*t+r,112+16*t+r,10,bc={1:0}))
        for r in range(0,16,2): A(pk("fma",64+16*t+r,64+16*t+r,10,112+16*t+r,bc={1:1},neg=(2,)))
        for r in range(8): A(f"v_cvt_pk_bf16_f32 v{40+8*t+r}, v{64+16*t+2*r}, v{65+16*t+2*r}")
        for e in range(2): A(f"v_mfma_f32_32x32x16_bf16 v[{176+32*t+16*e}:{191+32*t+16*e}], v[{28+4*e}:{31+4*e}], v[{40+8*t+4*e}:{43+8*t+4*e}], 0")
    A("s_waitcnt lgkmcnt(0)")
    for r in range(0,16,2): A(pk("mul",144+r,144+r,12,bc={1:0}))
    for r in range(0,16,2): A(pk("fma",96+r,96+r,160+r,144+r,neg=(2,)))
    for r in range(8): A(f"v_cvt_pk_bf16_f32 v{40+r}, v{96+2*r}, v{97+2*r}")
    A("s_lshl_b32 s47, s22, 11\nv_add_u32 v23, s47, v25\nds_write_b128 v23, v[40:43] offset:53248\nds_write_b128 v23, v[44:47] offset:54272")
    def softmax(t):
        P=[176+32*t,192+32*t]; m=[(10,11,(2,4)),(14,15,(6,36))]
        def both(f):
            a=f(0).split("\n"); b=f(1).split("\n")
            for x,y in zip(a,b): A(x); A(y)
        def mx(e):
            p=P[e]; a,b,c=m[e]
            return "\n".join([f"v_max3_f32 v{a}, v{p}, v{p+1}, v{p+2}",f"v_max3_f32 v{b}, v{p+8}, v{p+9}, v{p+10}",f"v_max3_f32 v{a}, v{a}, v{p+3}, v{p+4}",f"v_max3_f32 v{b}, v{b}, v{p+11}, v{p+12}",
              f"v_max3_f32 v{a}, v{a}, v{p+5}, v{p+6}",f"v_max3_f32 v{b}, v{b}, v{p+13}, v{p+14}",f"v_max_f32 v{a}, v{a}, v{p+7}",f"v_max_f32 v{b}, v{b}, v{p+15}",
              f"v_permlane32_swap_b32 v{a}, v{b}",f"v_max_f32 v{a}, v{a}, v{b}",f"v_mul_f32 v{a}, s58, v{a}",f"v_mov_b32 v{b}, v{a}",f"v_permlane32_swap_b32 v{a}, v{b}"])
        both(mx)
        both(lambda e:"\n".join(pk("fma",P[e]+r,P[e]+r,"s[58:59]",m[e][0],bc={1:0,2:r>>3},neg=(2,)) for r in range(0,16,2)))
        both(lambda e:"\n".join(f"v_exp_f32 v{P[e]+r}, v{P[e]+r}" for r in range(16)))
        def sm(e):
            p=P[e]; a,b,(c,d)=m[e]; r=[pk("add",c,p,p+2),pk("add",d,p+8,p+10)]
            for i in (4,6): r+=[pk("add",c,c,p+i),pk("add",d,d,p+8+i)]
            r+=[f"v_add_f32 v{a}, v{c}, v{c+1}",f"v_add_f32 v{b}, v{d}, v{d+1}"]
            r+=[f"v_permlane32_swap_b32 v{a}, v{b}",f"v_add_f32 v{a}, v{a}, v{b}",f"v_rcp_f32 v{a}, v{a}",f"v_mov_b32 v{b}, v{a}",f"v_permlane32_swap_b32 v{a}, v{b}"]
            return "\n".join(r)
        both(sm)
        both(lambda e:"\n".join(pk("mul",P[e]+r,P[e]+r,m[e][0],bc={1:r>>3}) for r in range(0,16,2)))
        both(lambda e:"\n".join(f"v_cvt_pk_bf16_f32 v{48+8*e+r}, v{P[e]+2*r}, v{P[e]+2*r+1}" for r in range(8)))
    wl(9)
    softmax(1)
    for e in range(2):
        for q in range(4): A(f"ds_write_b64 v24, v[{48+8*e+2*q}:{49+8*e+2*q}] offset:{16384+e*9216+16*q}")
    A("s_waitcnt lgkmcnt(0)\ns_barrier")
    A("s_cmp_ge_u32 s22, 4\ns_cbranch_scc1 Q_NOKV1")
    A("v_bfe_u32 v20, v1, 2, 2\nv_lshl_add_u32 v20, v26, 2, v20\nv_mul_u32_u24 v20, 72, v20\nv_bfe_u32 v21, v1, 4, 1\nv_lshl_add_u32 v20, v21, 5, v20\nv_and_b32 v22, 3, v1\nv_lshl_add_u32 v20, v22, 3, v20")
    A("s_mul_i32 s47, s22, 9216\nv_add_u32 v20, s47, v20\ns_lshr_b32 s47, s22, 1\ns_lshl_b32 s47, s47, 13\nv_add_u32 v22, s47, v25\ns_and_b32 s47, s22, 1\nv_cmp_ne_u32 s[62:63], s47, v21")
    for g in range(8):
        for rd in range(2): A(f"ds_read_b64_tr_b16 v[{64+4*g+2*rd}:{65+4*g+2*rd}], v20 offset:{16384+(16*g+8*rd)*72}")
        A(f"ds_read_b128 v[{112+4*g}:{115+4*g}], v22 offset:{53248+1024*g}")
    A("Q_NOKV1:")
    wl(10)
    softmax(0)
    for e in range(2):
        for fr in range(2): A(f"buffer_store_dwordx4 v[{48+8*e+4*fr}:{51+8*e+4*fr}], v25, s[12:15], s57 offen offset:{e*2048+fr*1024}{SC}")
    A("s_cmp_ge_u32 s22, 4\ns_cbranch_scc1 Q_END\ns_waitcnt lgkmcnt(0)\nv_mov_b32 v20, 0x3f803f80")
    for g in range(8):
        for i in range(4): A(f"v_cndmask_b32 v{112+4*g+i}, v{112+4*g+i}, v20, s[62:63]")
    for g in range(8): A(f"v_mfma_f32_32x32x16_bf16 v[208:223], v[{64+4*g}:{67+4*g}], v[{112+4*g}:{115+4*g}], {'v[208:223]' if g else '0'}")
    A(f"s_lshl_b32 s47, s21, 2\ns_add_u32 s47, s47, s22\ns_lshl_b32 s47, s47, 4\ns_add_u32 s47, s47, s20\ns_lshl_b32 s47, s47, 12\ns_add_u32 s47, s47, {KVP_OFF}")
    for q in range(4): A(f"buffer_store_dwordx4 v[{208+4*q}:{211+4*q}], v25, s[12:15], s47 offen offset:{1024*q}{SC}")
    A("Q_END:"); st(3); flush(4,20,"s22"); A("s_endpgm")
    A("K1_H:")
    st(1)
    mainloop("H",False)
    C1=-2*0.7978845608028654*LOG2E
    A(f"s_lshl_b32 s47, s20, 2\ns_add_u32 s47, s47, s23\ns_mul_i32 s47, s47, 43\ns_mul_i32 s56, s49, 6\ns_add_u32 s56, s56, s24\ns_add_u32 s47, s47, s56\ns_lshl_b32 s57, s47, 11\nv_lshlrev_b32 v25, 4, v1\nv_mov_b32 v13, {f32(C1*0.044715)}\nv_mov_b32 v12, {f32(C1)}\nv_mov_b32 v14, 1.0")
    rdq(112,21,9216); rdq(128,21,10240)
    for t in range(3):
        b=112+32*(t&1); nb=112+32*((t+1)&1)
        A(f"s_cmp_ge_u32 s56, {43-2*t}\ns_cbranch_scc1 H_END")
        if t<2: rdq(nb,21,9216+256*(t+1)); rdq(nb+16,21,10240+256*(t+1)); A("s_waitcnt lgkmcnt(8)")
        else: A("s_waitcnt lgkmcnt(0)")
        a=64+16*t
        for h in range(2):
            R=range(8*h,8*h+8)
            R2=range(8*h,8*h+8,2)
            for r in R2: A(pk("fma",b+r,10,b+r,b+16+r,bc={0:0},neg=(0,)))
            for r in R2: A(pk("fma",a+r,a+r,10,b+r,bc={1:1}))
            for r in R2: A(pk("mul",b+r,a+r,a+r))
            for r in R2: A(pk("fma",b+r,b+r,12,12,bc={1:1,2:0}))
            for r in R2: A(pk("mul",b+r,b+r,a+r))
            for r in R: A(f"v_exp_f32 v{b+r}, v{b+r}")
            for r in R2: A(pk("add",b+r,b+r,14,bc={1:0}))
            for r in R: A(f"v_rcp_f32 v{b+r}, v{b+r}")
            for r in R2: A(pk("mul",a+r,a+r,b+r))
            for r in range(4): A(f"v_cvt_pk_bf16_f32 v{40+8*t+4*h+r}, v{a+8*h+2*r}, v{a+8*h+2*r+1}")
            A(f"buffer_store_dwordx4 v[{40+8*t+4*h}:{43+8*t+4*h}], v25, s[12:15], s57 offen offset:{1024*h}{SC}")
        A("s_add_u32 s57, s57, 4096")
    A("H_END:"); st(3); flush(4,20,"s22")
    A("K1_END:\ns_endpgm")
    return L
```

```python
from asmlib import *
H_OFF=0; PQ_OFF=0x600000; KVP_OFF=0xA00000; KVF_OFF=0xC00000; ST_OFF=0x2000000
WS_SIZE=0x3000000
LOG2E=1.4426950408889634
import struct
def f32(x): return "0x%08x"%struct.unpack("<I",struct.pack("<f",x))[0]
def stamp_fns(A,on,kidx,nw,lv=9):
    def st(i):
        if on: A(f"s_memrealtime s[{64+2*i}:{65+2*i}]")
        if on and i in (0,3): A(f"s_memtime s[{82+i+i%2}:{83+i+i%2}]")
    def flush(n,tmp,wreg):
        if not on: return
        A("s_waitcnt lgkmcnt(0)")
        A(f"s_lshl_b32 s60, s2, 3\ns_add_u32 s60, s60, {wreg}\ns_lshl_b32 s60, s60, 6\ns_add_u32 s60, s60, {ST_OFF+kidx*0x40000}")
        A(f"v_mov_b32 v{tmp+1}, 0\ns_sub_u32 s82, s86, s82\nv_writelane_b32 v{lv}, s82, 11")
        for i in range(n): A(f"v_mov_b32 v{tmp}, s{64+2*i}\nbuffer_store_dword v{tmp}, v{tmp+1}, s[12:15], s60 offen offset:{4*i}")
        A(f"s_mov_b64 exec, 0xfff\nv_lshlrev_b32 v{tmp}, 2, v1\nbuffer_store_dword v{lv}, v{tmp}, s[12:15], s60 offen offset:16")
    return st,flush
def srd(A,r,ptr,size): A(f"s_mov_b32 s{r}, s{ptr}\ns_mov_b32 s{r+1}, s{ptr+1}\ns_mov_b32 s{r+2}, {size}\ns_mov_b32 s{r+3}, 0x20000")
def pk(op,d,*src,bc={},neg=()):
    n=len(src); f=lambda x: x if isinstance(x,str) else f"v[{x&~1}:{(x&~1)+1}]"
    lo=[bc.get(i,0) for i in range(n)]; hi=[bc.get(i,1) for i in range(n)]; ng=[1 if i in neg else 0 for i in range(n)]
    t=f"v_pk_{op}_f32 v[{d}:{d+1}], "+", ".join(f(x) for x in src)
    j=lambda v:"["+",".join(map(str,v))+"]"
    if any(lo): t+=" op_sel:"+j(lo)
    if not all(hi): t+=" op_sel_hi:"+j(hi)
    if any(ng): t+=f" neg_lo:{j(ng)} neg_hi:{j(ng)}"
    return t
def k1(STAMP=False,O={}):
    L=[]; A=L.append; SC=" "+O.get("SC","").replace("_"," ")
    st,flush=stamp_fns(A,STAMP,0,8)
    def wl(i):
        if STAMP: A(f"s_memrealtime s[80:81]\ns_waitcnt lgkmcnt(0)\nv_writelane_b32 v9, s80, {i}")
    A("k1_kernel:")
    A("s_cmp_ge_u32 s2, 256\ns_cbranch_scc1 K1_END")
    st(0)
    A("s_load_dwordx4 s[32:35], s[0:1], 0\ns_load_dwordx2 s[36:37], s[0:1], 16\ns_load_dwordx4 s[40:43], s[0:1], 40\ns_load_dwordx2 s[44:45], s[0:1], 88\ns_load_dwordx2 s[88:89], s[0:1], 24\ns_load_dwordx2 s[90:91], s[0:1], 56\ns_load_dwordx2 s[62:63], s[0:1], 72")
    A("v_lshrrev_b32 v20, 6, v0\nv_and_b32 v1, 63, v0\nv_readfirstlane_b32 s22, v20")
    A("s_and_b32 s31, s2, 7\ns_lshr_b32 s38, s2, 3\ns_and_b32 s20, s31, 1\ns_lshl_b32 s20, s20, 3\ns_bfe_u32 s39, s38, 0x30001\ns_add_u32 s20, s20, s39")
    A("s_lshr_b32 s21, s31, 1\ns_and_b32 s39, s38, 1\ns_lshl_b32 s39, s39, 2\ns_add_u32 s21, s21, s39\ns_lshr_b32 s39, s38, 4\ns_lshl_b32 s39, s39, 3\ns_add_u32 s21, s21, s39")
    A("s_and_b32 s23, s22, 3\ns_lshr_b32 s24, s22, 2\ns_xor_b32 s46, s23, s24")
    A("v_lshrrev_b32 v20, 3, v1\nv_lshrrev_b32 v21, 4, v1\nv_and_b32 v22, 7, v1")
    A("s_lshl_b32 s39, s20, 7\ns_lshl_b32 s47, s22, 4\ns_add_u32 s39, s39, s47\nv_add_u32 v23, s39, v20\nv_lshlrev_b32 v23, 10, v23")
    A("v_xor_b32 v24, v22, v21\nv_lshl_add_u32 v2, v24, 4, v23\nv_xor_b32 v24, 4, v24\nv_lshl_add_u32 v3, v24, 4, v23\nv_add_u32 v3, 0x2000, v3")
    A("v_and_b32 v24, 1, v21\nv_lshlrev_b32 v24, 2, v24\nv_xor_b32 v24, v22, v24\nv_lshlrev_b32 v24, 4, v24\ns_lshl_b32 s47, s22, 3\nv_add_u32 v25, s47, v20")
    A("v_lshrrev_b32 v26, 5, v1\nv_and_b32 v27, 31, v1")
    A("s_sub_u32 s49, s21, 8\ns_mul_i32 s28, s49, 384\ns_lshl_b32 s47, s21, 7\ns_movk_i32 s48, 3072\ns_movk_i32 s29, 1024\ns_cmp_ge_u32 s21, 8\ns_cselect_b32 s28, s28, s47\ns_cselect_b32 s48, 2752, s48\ns_cselect_b32 s29, 128, s29")
    A("v_mul_lo_u32 v4, s48, v25\nv_add_u32 v4, v4, v24\ns_lshl_b32 s30, s48, 6\ns_mov_b32 s27, 0\ns_lshl_b32 s10, s48, 9\ns_mov_b32 s11, 0x20000\ns_mov_b32 s6, 2048*1024\ns_mov_b32 s7, 0x20000")
    A("s_lshl_b32 s50, s22, 11\ns_lshl_b32 s51, s22, 10\ns_add_u32 s51, s51, 16384\ns_mov_b32 s26, 0\ns_cmp_ge_u32 s21, 8\ns_waitcnt lgkmcnt(0)")
    A("s_mov_b32 s4, s32\ns_mov_b32 s5, s33\ns_cselect_b32 s8, s40, s34\ns_cselect_b32 s9, s41, s35")
    def dma_list():
        r=[]
        r.append("s_add_u32 m0, s26, s50\ns_add_u32 s53, s28, s29\nbuffer_load_dwordx4 v2, s[4:7], s27 offen lds")
        r.append("s_add_u32 m0, m0, 1024\ns_add_u32 s54, s53, s29\nbuffer_load_dwordx4 v3, s[4:7], s27 offen lds")
        r.append("s_add_u32 m0, s26, s51\ns_add_u32 s27, s27, 128\nbuffer_load_dwordx4 v4, s[8:11], s28 offen lds")
        r.append("s_add_u32 m0, m0, 8192\ns_add_u32 s28, s28, s30\nbuffer_load_dwordx4 v4, s[8:11], s53 offen lds")
        r.append("s_add_u32 m0, m0, 8192\ns_add_u32 s26, s26, 40960\nbuffer_load_dwordx4 v4, s[8:11], s54 offen lds")
        return r
    wl(8)
    for d in dma_list(): A(d)
    if "b0" in O: A("s_barrier")
    srd(A,12,44,WS_SIZE)
    if "tlb" in O:
        A("s_cmp_ge_u32 s22, 4\ns_cbranch_scc1 K1_NT\ns_mov_b32 s92, s44\ns_mov_b32 s93, s45\ns_mov_b32 s94, 0xC10000\ns_mov_b32 s95, 0x20000\ns_mov_b32 s47, 18")
        for w,(p,sz,sh) in enumerate(((62,2048*1024,15),(90,1376*1024,15),(88,512*1024,13))):
            A(f"s_cmp_eq_u32 s22, {w+1}\ns_cselect_b32 s92, s{p}, s92\ns_cselect_b32 s93, s{p+1}, s93\ns_cselect_b32 s94, {sz}, s94\ns_cselect_b32 s47, {sh}, s47")
        A("v_lshlrev_b32 v41, s47, v1\nbuffer_load_dword v41, v41, s[92:95], 0 offen\nK1_NT:")
    A("s_cmp_ge_u32 s21, 8\ns_cbranch_scc1 K1_HSET")
    srd(A,16,36,32*512)
    A("s_lshl_b32 s47, s21, 2\ns_lshl_b32 s53, s24, 1\ns_add_u32 s56, s47, s53\ns_lshl_b32 s47, s56, 9\nv_lshlrev_b32 v20, 4, v1\ns_add_u32 m0, s51, 122880-16384\nbuffer_load_dwordx4 v20, s[16:19], s47 offen lds")
    A("s_branch K1_SET\nK1_HSET:")
    srd(A,16,42,2752)
    A("s_mul_i32 s47, s49, 384\ns_lshl_b32 s53, s24, 6\ns_add_u32 s47, s47, s53\nv_lshlrev_b32 v20, 1, v27")
    for t in range(3): A(f"buffer_load_ushort v{28+t}, v20, s[16:19], s47 offen offset:{128*t}")
    A(f"s_lshr_b32 s47, s2, 3\ns_cmp_lg_u32 s47, 16\ns_cbranch_scc1 K1_SET\ns_and_b32 s47, s2, 7\ns_lshl_b32 s47, s47, 13\ns_add_u32 s47, s47, {KVF_OFF}\nv_lshlrev_b32 v20, 4, v0\nv_mov_b32 v64, -1\nv_mov_b32 v65, -1\nv_mov_b32 v66, -1\nv_mov_b32 v67, -1\nbuffer_store_dwordx4 v[64:67], v20, s[12:15], s47 offen")
    A("K1_SET:")
    PD=2
    for s in range(PD-1):
        for d in dma_list(): A(d)
        if s==0 and "b1" in O: A("s_barrier")
    if "tch" in O:
        A("s_cmp_ge_u32 s22, 4\ns_cbranch_scc1 K1_TW\ns_lshr_b32 s47, s21, 2\ns_lshl_b32 s47, s47, 5\ns_lshl_b32 s53, s22, 3\ns_add_u32 s47, s47, s53\ns_lshl_b32 s53, s20, 7\ns_add_u32 s47, s47, s53\ns_lshl_b32 s47, s47, 10\nv_lshlrev_b32 v42, 7, v1\nbuffer_load_dword v42, v42, s[4:7], s47 offen\ns_branch K1_TE")
        A("K1_TW:\ns_and_b32 s47, s20, 7\ns_mul_i32 s47, s47, s30\ns_add_u32 s47, s47, s28\ns_lshl_b32 s53, s30, 1\ns_sub_u32 s47, s47, s53\ns_mul_i32 s53, s23, s29\ns_add_u32 s47, s47, s53\nv_mul_lo_u32 v42, s48, v1\nbuffer_load_dword v42, v42, s[8:11], s47 offen\nK1_TE:")
    A("s_lshl_b32 s47, s23, 5\nv_add_u32 v20, s47, v27")
    A("v_bfe_u32 v21, v20, 1, 3\nv_xor_b32 v21, v21, v26\nv_lshlrev_b32 v20, 7, v20")
    for j in range(4):
        A(f"s_xor_b32 s47, s46, {j}\ns_lshl_b32 s47, s47, 1\nv_xor_b32 v22, s47, v21\nv_lshl_add_u32 v{5+j}, v22, 4, v20")
    A("v_bfe_u32 v20, v1, 2, 2\nv_lshl_add_u32 v20, v26, 3, v20\nv_lshlrev_b32 v20, 7, v20")
    A("v_bfe_u32 v21, v1, 4, 1\nv_bfe_u32 v22, v1, 1, 1\nv_lshl_add_u32 v21, v21, 1, v22\nv_bfe_u32 v22, v1, 3, 1\nv_xor_b32 v22, s24, v22\nv_lshl_add_u32 v21, v22, 2, v21")
    A("v_lshl_add_u32 v20, v21, 4, v20\nv_and_b32 v22, 1, v1\nv_lshl_add_u32 v20, v22, 3, v20")
    for j in range(4):
        A(f"s_xor_b32 s47, s46, {j}\ns_lshl_b32 s47, s47, 11\ns_add_u32 s47, s47, 16384\nv_add_u32 v{36+j}, s47, v20")
    for r in [12,13]+list(range(64,112))+list(range(128,160)): A(f"v_mov_b32 v{r}, 0")
    A("s_mov_b32 s25, 0\ns_mov_b32 s55, 0xffff0000\ns_mov_b32 s59, -81920\ns_mov_b32 s60, 0\ns_mov_b32 s52, 0x400000\ns_mov_b32 s61, 1376*1024")
    A("v_bfe_u32 v20, v1, 2, 2\nv_bfe_u32 v21, v1, 4, 1\nv_cmp_eq_u32 vcc, v20, v21\nv_mov_b32 v20, 0x3f803f80\nv_cndmask_b32 v160, 0, v20, vcc\nv_mov_b32 v161, v160\nv_mov_b32 v162, v160\nv_mov_b32 v163, v160")
    XB=[112,128]; WB=[116,132]
    def reads(j,b):
        r=[f"ds_read_b128 v[{XB[b]}:{XB[b]+3}], v{5+j}"]
        for t in range(3):
            for rd in range(2): r.append(f"ds_read_b64_tr_b16 v[{WB[b]+4*t+2*rd}:{WB[b]+4*t+2*rd+1}], v{36+j} offset:{t*8192+rd*512}")
        if "nowrd" in O: r=r[:1]
        if "noxrd" in O: r=r[1:]
        return r
    def m16(d,x): return f"v_mfma_f32_16x16x32_bf16 v[{d}:{d+3}], v[160:163], v[{x}:{x+3}], v[{d}:{d+3}]"
    def stats(j,b):
        r=[]
        if j in (0,2):
            if "sqm" in O: return [m16(144,XB[b]),f"v_mfma_f32_32x32x16_bf16 v[224:239], v[{XB[b]}:{XB[b]+3}], v[{XB[b]}:{XB[b]+3}], v[224:239]"]
            for i in range(4):
                x=XB[b]+i; a=20+2*(i&1)
                r+= [f"v_lshlrev_b32 v{a}, 16, v{x}",f"v_and_b32 v{a+1}, s55, v{x}",f"v_fmac_f32 v12, v{a}, v{a}",f"v_fmac_f32 v13, v{a+1}, v{a+1}"]
            r.append(m16(144,XB[b]))
        else: r=[m16(148+4*t,WB[b]+4*t) for t in ((0,1) if j==1 else (2,))]
        return r
    def mfmas(b,qkv):
        r=[]
        for t in range(3):
            x=f"v[{XB[b]}:{XB[b]+3}]"; w=f"v[{WB[b]+4*t}:{WB[b]+4*t+3}]"; c=f"v[{64+16*t}:{79+16*t}]"
            r.append(f"v_mfma_f32_32x32x16_bf16 {c}, {x}, {w}, {c}" if (qkv and t==2) else f"v_mfma_f32_32x32x16_bf16 {c}, {w}, {x}, {c}")
        return r
    def step(jc,b,qkv,rds,dm=[],ex=[]):
        m=mfmas(b,qkv); s=stats(jc,b)
        if "nostat" in O: s=[]
        if "nomfma" in O: m=["","",""]
        if "nov" in O: s=[x for x in s if "mfma" in x]
        if "no16" in O: s=[x for x in s if "mfma" not in x]
        if "e16" in O:
            q=[x for x in s if "mfma" in x]; s=[x for x in s if "mfma" not in x]
            m[2]="\n".join([m[2]]+q)
        h=len(s)//2
        A(m[0])
        for x in rds: A(x)
        A(m[1])
        for x in dm[:1]+s[:h]+ex[:4]: A(x)
        A(m[2])
        for x in dm[1:]+s[h:]+ex[4:]: A(x)
    def mainloop(P,qkv):
        A(f"{P}_LOOP:")
        hp=("pf" in O and not qkv)
        A(f"s_cmp_lt_u32 s25, 7\ns_cbranch_scc1 {P}_W5\ns_waitcnt vmcnt(0)\n{P}_W5:\ns_waitcnt vmcnt(5)\ns_barrier")
        if STAMP: A("s_memtime s[80:81]" if "cyc" in O else "s_memrealtime s[80:81]")
        d=dma_list()
        n1=int(O.get("n1",2))
        d1=f"s_cmp_ge_u32 s25, 6\ns_cbranch_scc1 {P}_S1\n"+"\n".join(d[:n1])+f"\n{P}_S1:"
        d2=f"s_cmp_ge_u32 s25, 6\ns_cbranch_scc1 {P}_S2\n"+"\n".join(d[n1:])+f"\n{P}_S2:"
        if hp: A(f"s_cmp_lg_u32 s25, 7\ns_cbranch_scc1 {P}_NPF\ns_mov_b32 s95, 0x20000\ns_bfe_u32 s47, s2, 0x40003\ns_lshl_b32 s47, s47, 3\ns_add_u32 s47, s47, s22\ns_cmp_lt_u32 s47, 86\ns_cselect_b32 s92, s90, s88\ns_cselect_b32 s93, s91, s89\ns_cselect_b32 s94, s61, 0x80000\ns_cselect_b32 s53, 0, 86\ns_sub_u32 s47, s47, s53\ns_lshl_b32 s47, s47, 14\nv_lshlrev_b32 v2, 7, v1\nv_add_u32 v3, 0x2000, v2\nbuffer_load_dword v2, v2, s[92:95], s47 offen\nbuffer_load_dword v3, v3, s[92:95], s47 offen\n{P}_NPF:")
        step(3,1,qkv,reads(0,0),[d1])
        A("s_waitcnt lgkmcnt(0)")
        if STAMP: A("v_cmp_eq_u32 vcc, s25, v1\nv_mov_b32 v40, s80\nv_cndmask_b32 v9, v9, v40, vcc")
        step(0,0,qkv,reads(1,1),[d2])
        A("s_waitcnt lgkmcnt(0)"); step(1,1,qkv,reads(2,0))
        A("s_add_u32 s25, s25, 1\ns_add_u32 s60, s60, 1\ns_cmp_eq_u32 s60, 3\ns_cselect_b32 s47, s59, 40960\ns_cselect_b32 s60, 0, s60")
        A("s_waitcnt lgkmcnt(0)"); step(2,0,qkv,reads(3,1),[],[f"v_add_u32 v{r}, s47, v{r}" for r in (5,6,7,8,36,37,38,39)])
        A(f"s_cmp_eq_u32 s26, 122880\ns_cselect_b32 s26, 0, s26\ns_cmp_lt_u32 s25, 8\ns_waitcnt lgkmcnt(0)\ns_cbranch_scc1 {P}_LOOP")
        step(3,1,qkv,[])
        st(2)
        A("v_mov_b32 v10, v144\nv_add_f32 v12, v12, v13\nv_mov_b32 v14, v148\nv_mov_b32 v16, v152\nv_mov_b32 v18, v156\nv_mov_b32 v19, v156")
        A("v_permlane32_swap_b32 v10, v12\nv_permlane32_swap_b32 v14, v16\nv_permlane32_swap_b32 v18, v19")
        A("s_lshl_b32 s47, s24, 9\ns_lshl_b32 s53, s23, 7\ns_add_u32 s47, s47, s53\ns_add_u32 s47, s47, 131072\nv_lshlrev_b32 v20, 2, v27\nv_lshl_add_u32 v21, v26, 10, v20\nv_add_u32 v21, s47, v21")
        A("s_mul_i32 s47, s23, 768\ns_lshl_b32 s53, s24, 7\ns_add_u32 s47, s47, s53\ns_add_u32 s47, s47, 131072\nv_add_u32 v20, s47, v20\nv_lshl_add_u32 v22, v26, 8, v20")
        A("v_add_f32 v10, v10, v12\nv_add_f32 v14, v14, v16\nv_add_f32 v18, v18, v19")
        A("ds_write_b32 v21, v10\nds_write_b32 v22, v14 offset:2048\nds_write_b32 v20, v18 offset:2560")
        A("s_lshl_b32 s47, s23, 7\ns_add_u32 s47, s47, 131072\nv_lshlrev_b32 v20, 2, v27\nv_add_u32 v22, s47, v20\ns_lshl_b32 s53, s24, 7\ns_add_u32 s53, s53, 131072\nv_add_u32 v21, s53, v20")
        if qkv:
            A("v_bfe_u32 v23, v1, 2, 2\nv_lshl_add_u32 v23, v26, 2, v23\nv_lshlrev_b32 v23, 5, v23\nv_and_b32 v24, 3, v1\nv_lshl_add_u32 v23, v24, 3, v23\ns_add_u32 s47, s51, 122880-16384\nv_add_u32 v23, s47, v23")
            for e in range(2):
                for rd in range(2): A(f"ds_read_b64_tr_b16 v[{28+4*e+2*rd}:{29+4*e+2*rd}], v23 offset:{512*e+256*rd}")
        A("s_waitcnt lgkmcnt(0)\ns_barrier")
        for i in range(4): A(f"ds_read_b32 v{10+i}, v22 offset:{512*i}")
        for t in range(3):
            for w in range(4): A(f"ds_read_b32 v{112+4*t+w}, v21 offset:{2048+768*w+256*t}")
        if qkv:
            A("v_and_b32 v23, 16, v1\nv_mul_u32_u24 v23, 0x800, v23\nv_lshl_or_b32 v23, v23, 16, v23")
            for r in range(8): A(f"v_xor_b32 v{28+r}, v23, v{28+r}")
        for t in range(3): A(f"v_mov_b32 v{135+4*t}, 0\n"+(f"v_mov_b32 v{134+4*t}, 0" if qkv else f"v_lshl_or_b32 v{134+4*t}, v{28+t}, 16, v{28+t}"))
        A("v_cmp_gt_u32 vcc, 32, v1\nv_mov_b32 v131, 0\ns_waitcnt lgkmcnt(12)")
        A(f"v_add_f32 v10, v10, v11\nv_add_f32 v12, v12, v13\nv_mul_f32 v10, {f32(-1/512)}, v10\nv_mul_f32 v11, v10, v10\nv_mov_b32 v13, {f32(1/512)}\nv_fma_f32 v12, v12, v13, -v11\nv_max_f32 v12, 0, v12")
        A(f"v_add_f32 v11, {f32(1e-5)}, v12\nv_rsq_f32 v11, v11")
        def split(x,t,d): A(f"v_cvt_pk_bf16_f32 v{t}, v{x}, v{x}\nv_lshlrev_b32 v{t}, 16, v{t}\nv_sub_f32 v{t}, v{x}, v{t}\nv_cvt_pk_bf16_f32 v{t}, v{x}, v{t}\nv_cndmask_b32 v{d}, 0, v{t}, vcc")
        split(10,13,128); A("v_mov_b32 v129, v128")
        if qkv: A("v_mov_b32 v130, 0\ns_lshl_b32 s47, s22, 7\nv_add_u32 v20, s47, v20\nds_write_b32 v20, v11 offset:8192\nv_lshlrev_b32 v23, 4, v26\nv_add_u32 v23, s47, v23")
        else:
            A(f"v_mul_f32 v13, v11, v11\nv_fmaak_f32 v13, v13, v12, {f32(1e-5)}\nv_rsq_f32 v13, v13\nv_mul_f32 v11, v11, v13\nv_rcp_f32 v12, v11"); split(12,13,130)
        for t in ((1,0,2) if qkv else (0,1,2)):
            c=112+4*t; a=132+4*t
            if t==(1 if qkv else 0): A(f"s_waitcnt lgkmcnt({1 if qkv else 0})")
            A(f"v_add_f32 v{c}, v{c}, v{c+1}\nv_add_f32 v{c+2}, v{c+2}, v{c+3}\nv_add_f32 v{c}, v{c}, v{c+2}\nv_cvt_pk_bf16_f32 v{a}, v{c}, v{c}\nv_lshlrev_b32 v{c+1}, 16, v{a}\nv_sub_f32 v{c}, v{c}, v{c+1}\nv_cvt_pk_bf16_f32 v{a+1}, v{c}, v{c}")
            acc=f"v[{64+16*t}:{79+16*t}]"
            A(f"v_mfma_f32_32x32x16_bf16 {acc}, v[128:131], v[{a}:{a+3}], {acc}" if (qkv and t==2) else f"v_mfma_f32_32x32x16_bf16 {acc}, v[{a}:{a+3}], v[128:131], {acc}")
    if "prio" in O: A("s_cmp_lt_u32 s22, 4\ns_cbranch_scc1 K1_NP\ns_setprio 1\nK1_NP:")
    A("s_cmp_ge_u32 s21, 8\ns_cbranch_scc1 K1_H")
    st(1)
    mainloop("Q",True)
    def rdq(base,addr,off):
        for q in range(4): A(f"ds_read_b128 v[{base+4*q}:{base+4*q+3}], v{addr} offset:{off+32*q}")
    A("s_waitcnt lgkmcnt(0)"); rdq(160,23,8192)
    A(f"s_lshl_b32 s47, s20, 2\ns_add_u32 s47, s47, s23\ns_lshl_b32 s47, s47, 5\ns_add_u32 s47, s47, s56\ns_lshl_b32 s47, s47, 11\ns_add_u32 s57, s47, {PQ_OFF}\nv_lshlrev_b32 v25, 4, v1")
    A("s_mul_i32 s47, s24, 18432\ns_mul_i32 s53, s23, 2304\ns_add_u32 s47, s47, s53\nv_mul_u32_u24 v24, 72, v27\nv_lshl_add_u32 v24, v26, 3, v24\nv_add_u32 v24, s47, v24")
    A(f"s_mov_b32 s58, {f32(LOG2E)}")
    for t in (1,0):
        for r in range(0,16,2): A(pk("mul",64+16*t+r,64+16*t+r,10,bc={1:1}))
        for r in range(8): A(f"v_cvt_pk_bf16_f32 v{40+8*t+r}, v{64+16*t+2*r}, v{65+16*t+2*r}")
        for e in range(2): A(f"v_mfma_f32_32x32x16_bf16 v[{176+32*t+16*e}:{191+32*t+16*e}], v[{28+4*e}:{31+4*e}], v[{40+8*t+4*e}:{43+8*t+4*e}], 0")
    A("s_waitcnt lgkmcnt(0)")
    for r in range(0,16,2): A(pk("mul",96+r,96+r,160+r))
    A("v_mov_b32 v112, 0x3f803f80\nv_mov_b32 v113, v112\nv_mov_b32 v114, v112\nv_mov_b32 v115, v112\ns_lshl_b32 s47, s22, 10\ns_add_u32 s47, s47, 16384\nv_add_u32 v116, s47, v25\nds_write_b128 v116, v[112:115] offset:53248")
    for r in range(8): A(f"v_cvt_pk_bf16_f32 v{40+r}, v{96+2*r}, v{97+2*r}")
    A("s_lshl_b32 s47, s22, 11\nv_add_u32 v23, s47, v25\nds_write_b128 v23, v[40:43] offset:53248\nds_write_b128 v23, v[44:47] offset:54272")
    def softmax(t,ins=[],mid=None):
        P=[176+32*t,192+32*t]; m=[(10,11,(2,4)),(14,15,(6,36))]
        def both(f):
            a=f(0).split("\n"); b=f(1).split("\n")
            for x,y in zip(a,b): A(x); A(y.replace(";;","\n"))
        def mx(e):
            p=P[e]; a,b,c=m[e]
            return "\n".join([f"v_max3_f32 v{a}, v{p}, v{p+1}, v{p+2}",f"v_max3_f32 v{b}, v{p+8}, v{p+9}, v{p+10}",f"v_max3_f32 v{a}, v{a}, v{p+3}, v{p+4}",f"v_max3_f32 v{b}, v{b}, v{p+11}, v{p+12}",
              f"v_max3_f32 v{a}, v{a}, v{p+5}, v{p+6}",f"v_max3_f32 v{b}, v{b}, v{p+13}, v{p+14}",f"v_max_f32 v{a}, v{a}, v{p+7}",f"v_max_f32 v{b}, v{b}, v{p+15}",
              f"v_permlane32_swap_b32 v{a}, v{b}",f"v_max_f32 v{a}, v{a}, v{b}",f"v_mul_f32 v{a}, s58, v{a}",f"v_mov_b32 v{b}, v{a}",f"v_permlane32_swap_b32 v{a}, v{b}"])
        both(mx)
        both(lambda e:"\n".join(pk("fma",P[e]+r,P[e]+r,"s[58:59]",m[e][0],bc={1:0,2:r>>3},neg=(2,)) for r in range(0,16,2)))
        if ins: A("s_waitcnt lgkmcnt(0)")
        both(lambda e:"\n".join(f"v_exp_f32 v{P[e]+r}, v{P[e]+r}"+(";;"+ins[r>>1] if (ins and e and r&1) else "") for r in range(16)))
        def sm(e):
            p=P[e]; a,b,(c,d)=m[e]; r=[pk("add",c,p,p+2),pk("add",d,p+8,p+10)]
            for i in (4,6): r+=[pk("add",c,c,p+i),pk("add",d,d,p+8+i)]
            r+=[f"v_add_f32 v{a}, v{c}, v{c+1}",f"v_add_f32 v{b}, v{d}, v{d+1}"]
            r+=[f"v_permlane32_swap_b32 v{a}, v{b}",f"v_add_f32 v{a}, v{a}, v{b}",f"v_rcp_f32 v{a}, v{a}",f"v_mov_b32 v{b}, v{a}",f"v_permlane32_swap_b32 v{a}, v{b}"]
            return "\n".join(r)
        both(sm)
        if mid: mid()
        both(lambda e:"\n".join(pk("mul",P[e]+r,P[e]+r,m[e][0],bc={1:r>>3}) for r in range(0,16,2)))
        both(lambda e:"\n".join(f"v_cvt_pk_bf16_f32 v{48+8*e+r}, v{P[e]+2*r}, v{P[e]+2*r+1}" for r in range(8)))
    softmax(1)
    for e in range(2):
        for q in range(4): A(f"ds_write_b64 v24, v[{48+8*e+2*q}:{49+8*e+2*q}] offset:{16384+e*9216+16*q}")
    A("s_waitcnt lgkmcnt(0)\ns_barrier")
    A("v_bfe_u32 v20, v1, 2, 2\nv_lshl_add_u32 v20, v26, 2, v20\nv_mul_u32_u24 v20, 72, v20\nv_bfe_u32 v21, v1, 4, 1\nv_lshl_add_u32 v20, v21, 5, v20\nv_and_b32 v22, 3, v1\nv_lshl_add_u32 v20, v22, 3, v20")
    A("s_mul_i32 s47, s23, 9216\nv_add_u32 v20, s47, v20\ns_lshr_b32 s47, s23, 1\ns_lshl_b32 s47, s47, 13\nv_add_u32 v22, s47, v25\ns_and_b32 s47, s22, 1\nv_cmp_ne_u32 vcc, s47, v21\nv_add_u32 v21, 16384, v25\nv_cndmask_b32 v22, v22, v21, vcc")
    for g in range(8):
        for rd in range(2): A(f"ds_read_b64_tr_b16 v[{64+4*g+2*rd}:{65+4*g+2*rd}], v20 offset:{16384+(16*g+8*rd)*72}")
        A(f"ds_read_b128 v[{112+4*g}:{115+4*g}], v22 offset:{53248+1024*g}")
    def kvst():
        A("s_cmp_ge_u32 s22, 4\ns_cbranch_scc1 Q_NOST")
        A(f"s_lshl_b32 s47, s21, 2\ns_add_u32 s47, s47, s22\ns_lshl_b32 s47, s47, 4\ns_add_u32 s47, s47, s20\ns_lshl_b32 s47, s47, 12\ns_add_u32 s47, s47, {KVP_OFF}")
        for q in range(4): A(f"buffer_store_dwordx4 v[{208+4*q}:{211+4*q}], v25, s[12:15], s47 offen offset:{1024*q}{SC}")
        A("Q_NOST:")
    softmax(0,[f"v_mfma_f32_32x32x16_bf16 v[208:223], v[{64+4*g}:{67+4*g}], v[{112+4*g}:{115+4*g}], {'v[208:223]' if g else '0'}" for g in range(8)],kvst)
    for e in range(2):
        for fr in range(2): A(f"buffer_store_dwordx4 v[{48+8*e+4*fr}:{51+8*e+4*fr}], v25, s[12:15], s57 offen offset:{e*2048+fr*1024}{SC}")
    A("Q_END:"); st(3); flush(4,20,"s22"); A("s_endpgm")
    A("K1_H:")
    st(1)
    mainloop("H",False)
    C1=-2*0.7978845608028654*LOG2E
    A(f"s_lshl_b32 s47, s20, 2\ns_add_u32 s47, s47, s23\ns_mul_i32 s47, s47, 43\ns_mul_i32 s56, s49, 6\ns_add_u32 s56, s56, s24\ns_add_u32 s47, s47, s56\ns_lshl_b32 s57, s47, 11\nv_lshlrev_b32 v25, 4, v1\nv_mov_b32 v13, {f32(C1*0.044715)}\nv_mov_b32 v12, {f32(C1)}\nv_mov_b32 v14, 1.0")
    for t in range(3):
        b=144+16*(t&1)
        A(f"s_cmp_ge_u32 s56, {43-2*t}\ns_cbranch_scc1 H_END")
        a=64+16*t
        for h in range(2):
            R=range(8*h,8*h+8)
            R2=range(8*h,8*h+8,2)
            for r in R2: A(pk("mul",a+r,a+r,10,bc={1:1}))
            for r in R2: A(pk("mul",b+r,a+r,a+r))
            for r in R2: A(pk("fma",b+r,b+r,12,12,bc={1:1,2:0}))
            for r in R2: A(pk("mul",b+r,b+r,a+r))
            for r in R: A(f"v_exp_f32 v{b+r}, v{b+r}")
            for r in R2: A(pk("add",b+r,b+r,14,bc={1:0}))
            for r in R: A(f"v_rcp_f32 v{b+r}, v{b+r}")
            for r in R2: A(pk("mul",a+r,a+r,b+r))
            for r in range(4): A(f"v_cvt_pk_bf16_f32 v{40+8*t+4*h+r}, v{a+8*h+2*r}, v{a+8*h+2*r+1}")
            A(f"buffer_store_dwordx4 v[{40+8*t+4*h}:{43+8*t+4*h}], v25, s[12:15], s57 offen offset:{1024*h}{SC}")
        A("s_add_u32 s57, s57, 4096")
    A("H_END:"); st(3); flush(4,20,"s22")
    A("K1_END:\ns_endpgm")
    return L
```

```python
from gen1 import *
def k2(STAMP=False,D=7,POLL=4,RU=6,BB=0):
    L=[]; A=L.append; vm=VM(A)
    st,flush=stamp_fns(A,STAMP,1,4,26)
    A("k2_kernel:")
    A("s_cmp_ge_u32 s2, 256\ns_cbranch_scc1 K2_END")
    st(0)
    A("s_load_dwordx2 s[36:37], s[0:1], 0\ns_load_dwordx2 s[38:39], s[0:1], 24\ns_load_dwordx4 s[40:43], s[0:1], 56\ns_load_dwordx4 s[44:47], s[0:1], 72\ns_load_dwordx2 s[48:49], s[0:1], 88")
    A("v_lshrrev_b32 v2, 6, v0\nv_and_b32 v1, 63, v0\nv_readfirstlane_b32 s50, v2")
    A("s_and_b32 s51, s2, 7\ns_lshr_b32 s52, s2, 3\ns_lshl_b32 s51, s51, 2\ns_lshr_b32 s53, s52, 3\ns_add_u32 s51, s51, s53\ns_and_b32 s52, s52, 7")
    A("s_lshr_b32 s53, s50, 1\ns_and_b32 s54, s50, 1")
    A("v_lshlrev_b32 v2, 4, v1")
    A("s_mul_i32 s55, s54, 88064\nv_add_u32 v3, s55, v2\ns_sub_u32 s55, 88064, s55\nv_add_u32 v4, s55, v2\ns_lshl_b32 s55, s54, 16\nv_add_u32 v5, s55, v2\ns_sub_u32 s55, 0x10000, s55\nv_add_u32 v6, s55, v2")
    A("s_mul_i32 s56, s51, 176128\ns_mul_i32 s55, s50, 22528\ns_add_u32 s56, s56, s55")
    A(f"s_lshl_b32 s57, s51, 17\ns_lshl_b32 s55, s50, 14\ns_add_u32 s57, s57, s55\ns_add_u32 s57, s57, {PQ_OFF}")
    A("v_lshrrev_b32 v8, 3, v1\nv_bfe_u32 v9, v1, 4, 1\nv_lshlrev_b32 v9, 2, v9\nv_and_b32 v10, 7, v1\nv_xor_b32 v9, v9, v10\nv_lshlrev_b32 v9, 4, v9\nv_lshl_add_u32 v7, v8, 10, v9\ns_lshl_b32 s55, s52, 7\nv_add_u32 v7, s55, v7")
    A(f"s_mul_i32 s58, s50, {11*32768}\ns_lshl_b32 s59, s50, 17\ns_mul_i32 s61, s50, {D*4096}")
    A("v_lshrrev_b32 v14, 4, v1\nv_and_b32 v15, 15, v1\nv_lshlrev_b32 v15, 4, v15\nv_lshl_add_u32 v16, v14, 14, v15\nv_lshl_add_u32 v15, v14, 2, v15")
    A("s_waitcnt lgkmcnt(0)")
    srd(A,4,40,1376*1024); srd(A,12,48,WS_SIZE); srd(A,16,48,64*43*2048)
    def unit_ops(u):
        r=[]; sl=u%D; B=16*sl
        if u<11:
            for i in range(2):
                for fr in range(2): r.append((f"buffer_load_dwordx4 a[{B+8*i+4*fr}:{B+8*i+4*fr+3}], v{3+i}, s[16:19], s56 offen offset:{1024*fr}",u))
            r[-1]=(r[-1][0]+"\ns_add_u32 s56, s56, 2048",u)
            if u==10: r[0]=("s_cmp_eq_u32 s50, 3\ns_cselect_b32 s55, 2048, 0\ns_sub_u32 s56, s56, s55\ns_lshl_b32 s55, s55, 4\ns_sub_u32 s58, s58, s55\n"+r[0][0],u)
            for p in range(4): r.append((f"s_add_u32 m0, s61, {sl*4096+p*1024}\ns_nop 0\nbuffer_load_dwordx4 v7, s[4:7], s58 offen lds\ns_add_u32 s58, s58, 8192",u))
        elif u<19:
            for i in range(2):
                for fr in range(2): r.append((f"buffer_load_dwordx4 a[{B+8*i+4*fr}:{B+8*i+4*fr+3}], v{5+i}, s[12:15], s57 offen offset:{1024*fr}",u))
            r[-1]=(r[-1][0]+"\ns_add_u32 s57, s57, 2048",u)
            for p in range(2): r.append((f"s_add_u32 m0, s61, {sl*4096+p*1024}\ns_nop 0\nbuffer_load_dwordx4 v7, s[8:11], s59 offen lds\ns_add_u32 s59, s59, 8192",u))
        return r
    A("s_cmp_lg_u32 s50, 3\ns_cbranch_scc1 K2_NR1")
    A(f"s_lshr_b32 s55, s2, 3\ns_lshl_b32 s55, s55, 16\ns_bfe_u32 s63, s2, 0x10002\ns_lshl_b32 s63, s63, 11\ns_add_u32 s55, s55, s63\ns_and_b32 s63, s2, 3\ns_lshl_b32 s63, s63, 8\ns_add_u32 s55, s55, s63\ns_add_u32 s55, s55, {KVP_OFF}")
    for k in range(4):
        for q in range(2): vm.issue(f"buffer_load_dwordx4 v[{64+8*k+4*q}:{67+8*k+4*q}], v16, s[12:15], s55 offen offset:{1024*q}","red",True)
        A("s_add_u32 s55, s55, 4096")
    A("K2_NR1:")
    for u in range(RU):
        for l,t in unit_ops(u): vm.issue(l,t)
        if u<BB: A("s_barrier")
    A("s_cmp_lg_u32 s50, 3\ns_cbranch_scc1 K2_NR2")
    vm.wait("red")
    for r in range(0,8,2): A(pk("add",64+r,64+r,72+r)+"\n"+pk("add",80+r,80+r,88+r))
    for r in range(0,8,2): A(pk("add",64+r,64+r,80+r))
    for r in range(4): A(f"v_permlane32_swap_b32 v{64+r}, v{68+r}")
    for r in range(0,4,2): A(pk("add",64+r,64+r,68+r))
    for r in range(2): A(f"v_permlane16_swap_b32 v{64+r}, v{66+r}")
    A(pk("add",64,64,66)+"\nv_cvt_pk_bf16_f32 v72, v64, v65")
    A(f"s_lshl_b32 s55, s2, 8\ns_add_u32 s55, s55, {KVF_OFF}")
    vm.issue("buffer_store_dword v72, v15, s[12:15], s55 offen sc1","rs",True)
    A("K2_NR2:")
    srd(A,8,38,512*1024); srd(A,20,36,2048*1024); srd(A,24,44,2048*1024); srd(A,28,42,1024)
    for u in range(RU,D-1):
        for l,t in unit_ops(u): vm.issue(l,t)
    A("v_lshrrev_b32 v12, 5, v1\nv_bfe_u32 v8, v1, 2, 2\nv_lshl_add_u32 v8, v12, 2, v8\nv_lshlrev_b32 v8, 7, v8\nv_and_b32 v9, 1, v1\nv_lshl_add_u32 v8, v9, 3, v8\nv_add_u32 v8, s61, v8")
    A("v_bfe_u32 v9, v1, 4, 1\nv_bfe_u32 v10, v1, 1, 1\nv_lshl_add_u32 v9, v9, 1, v10\nv_bfe_u32 v10, v1, 3, 1\nv_xor_b32 v10, s53, v10\nv_lshl_add_u32 v9, v10, 2, v9\nv_lshlrev_b32 v10, 4, v9\nv_xor_b32 v9, 64, v10\nv_add_u32 v9, v9, v8\nv_add_u32 v8, v10, v8")
    A("s_lshl_b32 s55, s51, 1\ns_add_u32 s55, s55, s54\ns_lshl_b32 s55, s55, 15\nv_and_b32 v11, 31, v1\nv_lshlrev_b32 v11, 10, v11\nv_add_u32 v11, s55, v11\ns_lshl_b32 s55, s52, 7\ns_lshl_b32 s63, s53, 6\ns_add_u32 s55, s55, s63\nv_lshlrev_b32 v13, 3, v12\nv_add_u32 v13, s55, v13\nv_add_u32 v11, v11, v13")
    AF=[192,208]
    def trs(u):
        r=[]; sl=u%D; F=AF[u&1]
        for j in range(2 if u<11 else 1):
            for a in range(2):
                for rd in range(2): r.append(f"ds_read_b64_tr_b16 v[{F+8*j+4*a+2*rd}:{F+8*j+4*a+2*rd+1}], v{8+a} offset:{sl*4096+j*2048+rd*1024}")
        return r
    def acc(a,i): return f"a[{128+32*a+16*i}:{143+32*a+16*i}]"
    def nm(u):
        B=16*(u%D); hd=u-11; N=128+32*(u&1); r=[]
        for fr in range(2):
            for i in range(2): r.append(f"v_mfma_f32_32x32x16_bf16 v[{N+16*i}:{N+16*i+15}], v[{64+8*hd+4*fr}:{67+8*hd+4*fr}], a[{B+8*i+4*fr}:{B+8*i+4*fr+3}], {'0' if fr==0 else f'v[{N+16*i}:{N+16*i+15}]'}")
        return r
    vm.wait(0)
    for x in trs(0): A(x)
    st(1)
    A(f"s_mov_b32 s63, {f32(1e-6)}")
    for u in range(19):
        nxt=unit_ops(u+D-1)
        def kvl(sc):
            kv=[]
            for hd in range(8):
                for fr in range(2): kv.append((f"buffer_load_dwordx4 v[{64+8*hd+4*fr}:{67+8*hd+4*fr}], v{22+(hd>>1)}, s[12:15], s3 offen offset:{(hd&1)*2048+fr*1024}{sc}","kv"))
            return kv
        if u==POLL:
            A(f"s_lshl_b32 s3, s50, 14\ns_add_u32 s3, s3, {KVF_OFF}\nv_mov_b32 v22, v2\nv_add_u32 v23, 4096, v2\nv_add_u32 v24, 8192, v2\nv_add_u32 v25, 12288, v2")
            nxt=nxt+kvl("")
        if u==12:
            nxt=nxt+[(f"buffer_load_dwordx2 v[{232+2*q}:{233+2*q}], v11, s[20:23], 0 offen offset:{16*q}","x") for q in range(4)]+[(f"buffer_load_dwordx2 v[{240+2*q}:{241+2*q}], v13, s[28:31], 0 offen offset:{16*q}","x") for q in range(4)]
        if u+1<19:
            vm.wait(u+1)
            if u+1==11:
                vm.wait("kv")
                A("s_mov_b32 s55, 0\nK2_CHK:\nv_max3_u32 v14, v64, v65, v66\nv_max3_u32 v15, v67, v68, v69")
                for r in range(70,126,4): A(f"v_max3_u32 v14, v14, v{r}, v{r+1}\nv_max3_u32 v15, v15, v{r+2}, v{r+3}")
                A("v_max3_u32 v14, v14, v126, v127\nv_max_u32 v14, v14, v15\nv_cmp_eq_u32 vcc, -1, v14\ns_cbranch_vccz K2_GO\ns_add_u32 s55, s55, 1\ns_cmp_gt_u32 s55, 0x10000\ns_cbranch_scc1 K2_GO\ns_sleep 8")
                for l,t in kvl(" sc1"): A(l)
                A("s_waitcnt vmcnt(0)\ns_branch K2_CHK\nK2_GO:")
        nr=trs(u+1) if u+1<19 else []
        if STAMP and u%2==0: A("s_memrealtime s[80:81]")
        A(f"s_waitcnt lgkmcnt(0)")
        if STAMP and u%2==0: A(f"v_writelane_b32 v26, s80, {u//2}")
        for x in nr: A(x)
        if u==10: A("s_cmp_lg_u32 s50, 3\ns_cbranch_scc1 K2_NZ\n"+"\n".join(f"v_mov_b32 v{AF[0]+r}, 0" for r in range(16))+"\nK2_NZ:")
        F=AF[u&1]; B=16*(u%D); ms=[]
        if u<11:
            for j in range(2):
                for a in range(2):
                    for i in range(2): ms.append(f"v_mfma_f32_32x32x16_bf16 {acc(a,i)}, v[{F+8*j+4*a}:{F+8*j+4*a+3}], a[{B+8*i+4*j}:{B+8*i+4*j+3}], {acc(a,i) if (u or j) else '0'}")
            if u==10: ms+=nm(11)
        else:
            if u+1<19: ms+=nm(u+1)
            N=128+32*(u&1); odd=(u-11)&1; v=[]
            for i in range(2):
                nb_=N+16*i+(8 if odd else 0); dn=N+16*i+(0 if odd else 8)
                v.append(f"v_add_f32 v{14+i}, s63, v{dn}")
            for i in range(2): v.append(f"v_rcp_f32 v{14+i}, v{14+i}")
            for i in range(2):
                nb_=N+16*i+(8 if odd else 0)
                for r in range(8): v.append(f"v_mul_f32 v{nb_+r}, v{nb_+r}, v{14+i}")
                for r in range(4): v.append(f"v_cvt_pk_bf16_f32 v{224+4*i+r}, v{nb_+2*r}, v{nb_+2*r+1}")
            if ms:
                k=len(v)//4
                for i in range(4): ms[i]+="\n"+"\n".join(v[i*k:(i+1)*k if i<3 else 99])
            else: ms.append("\n".join(v))
            for i in range(2):
                for a in range(2): ms.append(f"v_mfma_f32_32x32x16_bf16 {acc(a,i)}, v[{F+4*a}:{F+4*a+3}], v[{224+4*i}:{227+4*i}], {acc(a,i)}")
        per=-(-len(nxt)//len(ms))
        for k,m in enumerate(ms):
            A(m)
            for l,t in nxt[k*per:(k+1)*per]: vm.issue(l,t)
    st(2)
    A("v_add_u32 v14, s61, v2")
    for i in range(1,4):
        b=128+32*(i>>1)+16*(i&1)
        for q in range(4): A(f"ds_write_b128 v14, a[{b+4*q}:{b+4*q+3}] offset:{(i-1)*4096+q*1024}")
    for i in range(1,4): A(f"s_xor_b32 s55, s50, {i}\ns_mul_i32 s55, s55, {D*4096}\nv_add_u32 v{14+i}, s55, v2")
    for r in range(16): A(f"v_accvgpr_read_b32 v{64+r}, a{128+r}")
    vm.wait("x")
    for q in range(4):
        for k,(src) in enumerate((232+2*q,233+2*q)):
            A(f"v_lshlrev_b32 v18, 16, v{src}\nv_and_b32 v19, 0xffff0000, v{src}\nv_lshlrev_b32 v20, 16, v{src+8}\nv_and_b32 v21, 0xffff0000, v{src+8}\nv_add_f32 v18, v18, v20\nv_add_f32 v19, v19, v21\nv_add_f32 v{64+4*q+2*k}, v{64+4*q+2*k}, v18\nv_add_f32 v{65+4*q+2*k}, v{65+4*q+2*k}, v19")
    A("s_waitcnt lgkmcnt(0)\ns_barrier")
    for i in range(1,4):
        for q in range(4): A(f"ds_read_b128 v[{128+16*(i-1)+4*q}:{131+16*(i-1)+4*q}], v{14+i} offset:{(i-1)*4096+q*1024}")
    A("v_lshl_add_u32 v11, v12, 3, v11")
    for i in range(3):
        A(f"s_waitcnt lgkmcnt({8-4*i})")
        for r in range(16): A(f"v_add_f32 v{64+r}, v{64+r}, v{128+16*i+r}")
    for r in range(8): A(f"v_cvt_pk_bf16_f32 v{80+r}, v{64+2*r}, v{65+2*r}")
    for p in range(2):
        A(f"v_permlane32_swap_b32 v{80+4*p}, v{82+4*p}\nv_permlane32_swap_b32 v{81+4*p}, v{83+4*p}")
    for p in range(2): A(f"buffer_store_dwordx4 v[{80+4*p}:{83+4*p}], v11, s[24:27], 0 offen offset:{32*p}")
    st(3); flush(4,20,"s50")
    A("K2_END:\ns_endpgm")
    return L
```
